```python
import torch

def _softmax(x, axis=-1):
    return torch.softmax(x, dim=axis)
def _gelu(x):
    return torch.nn.functional.gelu(x, approximate="tanh")
def _silu(x):
    return torch.nn.functional.silu(x)
def _sigmoid(x):
    return torch.sigmoid(x)
def _layernorm(x, axis=-1, eps=1e-5):
    m = x.mean(dim=axis, keepdim=True)
    v = x.var(dim=axis, keepdim=True, unbiased=False)
    return (x - m) / torch.sqrt(v + eps)
def _scatter_add(tgt, idx, src, axis=0):
    return tgt.clone().index_add_(axis, idx, src)
def _segment_sum(src, seg, n):
    out = torch.zeros((n,) + src.shape[1:], dtype=src.dtype)
    return out.index_add_(0, seg, src)
def _pad(x, pw):
    flat = tuple(v for pair in reversed(pw) for v in pair)
    return torch.nn.functional.pad(x, flat)

kernel_name = 'parallel_sum__linear_attn_block__dense_activation_silu__prompt'

def setup_inputs():

    _w = (lambda a: (lambda t: t.to(torch.bfloat16) if t.is_floating_point() else t)(torch.as_tensor(a)))
    def _A_setup():
        B, S, D = 1, 2048, 512
        return {
            "x": _w((lambda *s: torch.randn(*s, dtype=torch.bfloat16) * 0.05)(B, S, D)),
            "wqkv": _w((lambda *s: torch.randn(*s, dtype=torch.bfloat16) * 0.1)(D, 3 * D)),
            "wo": _w((lambda *s: torch.randn(*s, dtype=torch.bfloat16) * 0.05)(D, D)),
        }
    _A_in = _A_setup()

    def _B_setup():
        B, S, D, F = 1, 2048, 512, 1792
        return {
            "x": _w((lambda *s: torch.randn(*s, dtype=torch.bfloat16) * 0.05)(B, S, D)),
            "w1": _w((lambda *s: torch.randn(*s, dtype=torch.bfloat16) * 0.8)(D, F) * (D ** -0.5)),
            "w2": _w((lambda *s: torch.randn(*s, dtype=torch.bfloat16) * 0.1)(F, D) * (F ** -0.5)),
        }
    _B_in = _B_setup()

    return {
        "A_x": _A_in["x"],
        "A_wqkv": _A_in["wqkv"],
        "A_wo": _A_in["wo"],
        "B_x": _B_in["x"],
        "B_w1": _B_in["w1"],
        "B_w2": _B_in["w2"],
    }

def reference(A_x, A_wqkv, A_wo, B_x, B_w1, B_w2):
    def _A_ref(x, wqkv, wo):
        B, S, D = x.shape
        H = 32; Dh = D // H
        qkv = (lambda x, *d: x.permute(*d))((x @ wqkv).reshape(B, S, 3, H, Dh), 2, 0, 3, 1, 4)
        q, k, v = qkv[0], qkv[1], qkv[2]
        phi = lambda t: torch.where(t > 0, t + 1, torch.exp(t)) + 1e-6
        pq, pk = phi(q), phi(k)
        kv = torch.einsum("bhsd,bhse->bhde", pk, v)
        z = torch.einsum("bhsd->bhd", pk)
        num = torch.einsum("bhqd,bhde->bhqe", pq, kv)
        den = torch.einsum("bhqd,bhd->bhq", pq, z)[..., None] + 1e-6
        o = num / den
        return (lambda x, *d: x.permute(*d))(o, 0, 2, 1, 3).reshape(B, S, D) @ wo

    def _B_ref(x, w1, w2):
        h = torch.einsum("bsd,df->bsf", x, w1)
        h = _silu(h)
        out = torch.einsum("bsf,fd->bsd", h, w2)
        return out

    x = A_x
    xn = _layernorm(x, axis=-1)
    return x + _A_ref(xn, A_wqkv, A_wo) + _B_ref(xn, B_w1, B_w2)
```

```python
import re

REG_RE = re.compile(r'^-?\|?(?:abs\()?([vas])(?:(\d+)|\[(\d+):(\d+)\])\)?\|?$')

def regs_of(tok):
    tok = tok.strip()
    if tok in ('vcc',): return {('s', 'vcc_lo'), ('s', 'vcc_hi')}
    if tok in ('vcc_lo', 'vcc_hi'): return {('s', tok)}
    if tok == 'exec': return {('s', 'exec_lo'), ('s', 'exec_hi')}
    if tok in ('exec_lo', 'exec_hi'): return {('s', tok)}
    if tok == 'm0': return {('s', 'm0')}
    m = REG_RE.match(tok)
    if not m: return set()
    f = m.group(1)
    if m.group(2) is not None: return {(f, int(m.group(2)))}
    return {(f, i) for i in range(int(m.group(3)), int(m.group(4)) + 1)}

TRANS = ('v_exp_', 'v_log_', 'v_rcp_', 'v_rsq_', 'v_sqrt_', 'v_sin_', 'v_cos_')

class Ins:
    __slots__ = ('text', 'op', 'ops', 'mods', 'cls', 'defs', 'uses', 'srcA', 'srcB', 'srcC', 'passes',
                 'trans', 'dpp', 'tag', 'store_data', 'wide', 'lds_dma', 'label', 'target', 'dot', 'pseudo')
    def __init__(self, text):
        self.text = text
        self.tag = None; self.pseudo = None; self.label = None; self.target = None
        self.defs = set(); self.uses = set(); self.srcA = set(); self.srcB = set(); self.srcC = set()
        self.passes = 0; self.trans = False; self.dpp = False; self.store_data = set(); self.wide = False
        self.lds_dma = False; self.dot = False; self.op = ''; self.ops = []; self.mods = []
        t = text.split(';')[0].strip()
        m = re.search(r';\s*@tag\s+(\S+)', text)
        if m: self.tag = m.group(1)
        if text.strip().startswith('@'):
            self.cls = 'pseudo'; self.pseudo = text.strip()[1:].split(); return
        if not t: self.cls = 'none'; return
        if t.endswith(':'): self.cls = 'label'; self.label = t[:-1]; return
        if t.startswith('.'): self.cls = 'dir'; return
        parts = t.split(None, 1)
        self.op = op = parts[0]
        rest = parts[1] if len(parts) > 1 else ''
        ops = [o.strip() for o in rest.split(',')] if rest else []
        joined = []
        depth = 0
        for o in ops:
            if depth > 0: joined[-1] += ',' + o
            else: joined.append(o)
            depth += o.count('[') - o.count(']')
        ops = joined
        if ops:
            last = ops[-1].split()
            ops[-1] = last[0] if last else ''
            self.mods = last[1:]
        self.ops = ops
        R = regs_of
        if op.startswith('v_mfma'):
            self.cls = 'mfma'
            self.defs = R(ops[0]); self.srcA = R(ops[1]); self.srcB = R(ops[2]); self.srcC = R(ops[3])
            self.uses = self.srcA | self.srcB | self.srcC
            self.passes = 8 if '32x32x16' in op else 4 if '16x16x32' in op else None
            assert self.passes, op
        elif op.startswith('v_'):
            self.cls = 'valu'
            self.trans = op.startswith(TRANS)
            self.dot = op.startswith('v_dot')
            self.dpp = any(x.startswith(('row_', 'quad_perm', 'wave_')) for x in self.mods) or op.endswith('_dpp')
            if op == 'v_nop': return
            if op.startswith('v_permlane') and 'swap' in op:
                self.defs = R(ops[0]) | R(ops[1]); self.uses = set(self.defs)
            elif op.startswith(('v_add_co', 'v_sub_co', 'v_addc_co', 'v_subb_co')):
                self.defs = R(ops[0]) | R(ops[1])
                for o in ops[2:]: self.uses |= R(o)
            else:
                self.defs = R(ops[0])
                for o in ops[1:]: self.uses |= R(o)
                if op.startswith(('v_fmac', 'v_dot2c', 'v_mac', 'v_writelane')) or self.dpp:
                    self.uses |= self.defs
        elif op.startswith('ds_'):
            self.cls = 'ds'
            if op.startswith(('ds_read', 'ds_bpermute', 'ds_permute', 'ds_swizzle')) or '_rtn' in op:
                self.defs = R(ops[0])
                for o in ops[1:]: self.uses |= R(o)
            else:
                for o in ops: self.uses |= R(o)
        elif op.startswith(('buffer_', 'global_')):
            self.cls = 'vmem'
            if op in ('buffer_wbl2', 'buffer_inv'): return
            if op.startswith('buffer_load'):
                if 'lds' in self.mods:
                    self.lds_dma = True
                    for o in ops: self.uses |= R(o)
                    self.uses |= R('m0')
                else:
                    self.defs = R(ops[0])
                    for o in ops[1:]: self.uses |= R(o)
            elif op.startswith('buffer_store'):
                for o in ops: self.uses |= R(o)
                self.store_data = R(ops[0]); self.wide = op.endswith(('x3', 'x4'))
            elif op.startswith('buffer_atomic'):
                for o in ops: self.uses |= R(o)
                if 'sc0' in self.mods: self.defs = R(ops[0])
            elif op.startswith('global_load'):
                self.defs = R(ops[0])
                for o in ops[1:]: self.uses |= R(o)
            elif op.startswith('global_store'):
                for o in ops: self.uses |= R(o)
                self.store_data = R(ops[1]); self.wide = op.endswith(('x3', 'x4'))
            elif op.startswith('global_atomic'):
                if 'sc0' in self.mods:
                    self.defs = R(ops[0])
                    for o in ops[1:]: self.uses |= R(o)
                else:
                    for o in ops: self.uses |= R(o)
            else: raise ValueError(op)
        elif op.startswith('s_'):
            self.cls = 'salu'
            if op.startswith(('s_load', 's_memtime', 's_memrealtime', 's_buffer_load')):
                self.cls = 'smem'
                self.defs = R(ops[0])
                for o in ops[1:]: self.uses |= R(o)
            elif op.startswith(('s_branch', 's_cbranch')):
                self.cls = 'branch'; self.target = ops[0]
                if 'vcc' in op: self.uses = R('vcc')
                if 'exec' in op: self.uses = R('exec')
            elif op.startswith(('s_waitcnt', 's_nop', 's_barrier', 's_endpgm', 's_setprio', 's_sleep')):
                pass
            elif op.startswith(('s_cmp', 's_bitcmp')):
                for o in ops: self.uses |= R(o)
            else:
                self.defs = R(ops[0])
                for o in ops[1:]: self.uses |= R(o)
                if 'saveexec' in op: self.defs |= R('exec'); self.uses |= R('exec')
                if op.startswith(('s_addk', 's_mulk')): self.uses |= self.defs
        else:
            raise ValueError('cannot parse: ' + text)

    def states(self):
        if self.cls in ('none', 'label', 'dir', 'pseudo'): return 0
        if self.op == 's_nop': return int(self.ops[0], 0) + 1
        return 1

def vec(s): return {r for r in s if r[0] in 'va'}
def sca(s): return {r for r in s if r[0] == 's'}

def need(p, c):
    n = 0
    if p.cls == 'valu':
        vd = vec(p.defs); sd = sca(p.defs)
        if c.cls == 'mfma' and vd & c.uses: n = max(n, 2)
        if c.cls == 'valu':
            if p.trans and vd & c.uses: n = max(n, 1)
            if c.op.startswith(('v_readfirstlane', 'v_readlane')) and vd & c.uses: n = max(n, 1)
            if c.op.startswith('v_permlane') and vd & c.uses: n = max(n, 2)
            if c.dpp and vd & c.uses: n = max(n, 2)
            if sd & c.uses:
                n = max(n, 4 if c.op.startswith(('v_readlane', 'v_writelane', 'v_div_fmas')) else 2)
            if c.op.startswith('v_cndmask') and len(c.ops) == 3 and sd & regs_of('vcc'): n = max(n, 2)
        if c.cls == 'vmem' and sd & c.uses: n = max(n, 5)
        if p.dot:
            if c.cls in ('valu', 'mfma', 'vmem', 'ds'):
                if c.op == p.op:
                    ab = set()
                    for o in c.ops[1:3]: ab |= regs_of(o)
                    if vd & ab: n = max(n, 3)
                elif vd & (c.uses | c.defs): n = max(n, 3)
        if p.trans and c.cls in ('vmem', 'ds') and vd & c.uses: n = max(n, 1)
    if p.cls == 'mfma':
        P = p.passes
        if c.cls == 'mfma':
            if p.defs & (c.srcA | c.srcB): n = max(n, P + 4)
            if p.defs & c.srcC and not (p.defs == c.srcC and c.passes == P): n = max(n, P + 2)
            if p.defs & c.defs and not (p.defs == c.defs and c.passes == P): n = max(n, P + 2)
        elif c.cls in ('valu', 'vmem', 'ds'):
            if p.defs & (c.uses | c.defs): n = max(n, P + 4)
            if p.srcC & c.defs: n = max(n, P - 1)
    if p.cls == 'vmem' and p.wide and p.store_data & c.defs:
        n = max(n, 2)
    if p.cls == 'salu' and ('s', 'm0') in p.defs and c.lds_dma: n = max(n, 1)
    return n

LOOK = 20

def fix_hazards_fast(ins):
    for _ in range(50):
        labels = {x.label: i for i, x in enumerate(ins) if x.cls == 'label'}
        srcs = {}
        for i, x in enumerate(ins):
            if x.cls == 'branch': srcs.setdefault(labels[x.target], []).append(i)
        extra = {}
        for i, c in enumerate(ins):
            if c.cls not in ('valu', 'mfma', 'vmem', 'ds'): continue
            worst = 0
            stack = [(i - 1, 0)]
            seen = set()
            while stack:
                j, d = stack.pop()
                while j >= 0 and d < LOOK:
                    if (j, d) in seen: break
                    seen.add((j, d))
                    p = ins[j]
                    if p.cls == 'label':
                        for s in srcs.get(j, []): stack.append((s, d))
                    else:
                        n = need(p, c)
                        if n - d > worst: worst = n - d
                        d += p.states()
                    d += extra.get(j, 0)
                    j -= 1
            if worst > 0: extra[i] = worst
        if not extra: return ins
        out = []
        for i, c in enumerate(ins):
            if i in extra: out.append(Ins(f's_nop {extra[i] - 1}'))
            out.append(c)
        ins = out
    raise RuntimeError('hazard fixing did not converge')

WAIT_RE = re.compile(r'(vmcnt|lgkmcnt)\((\d+)\)')

def auto_waits(ins):
    out = []
    vm = []
    lg = []
    on = True
    def emit(nv, nl):
        nonlocal vm, lg
        parts = []
        if nv is not None:
            nv = min(nv, 63); parts.append(f'vmcnt({nv})'); vm = vm[len(vm) - nv:] if nv else []
        if nl is not None:
            nl = min(nl, 15); parts.append(f'lgkmcnt({nl})'); lg = lg[len(lg) - nl:] if nl else []
        if parts: out.append(Ins('s_waitcnt ' + ' '.join(parts)))
    for x in ins:
        if x.cls == 'pseudo':
            p = x.pseudo
            if p[0] == 'reset': vm = []; lg = []
            elif p[0] == 'off': on = False
            elif p[0] == 'on': on = True
            elif p[0] in ('wait_vm', 'wait_lgkm'):
                q = vm if p[0] == 'wait_vm' else lg
                idx = [i for i, (d, t) in enumerate(q) if t in p[1:]]
                if idx:
                    n = len(q) - 1 - idx[-1]
                    emit(n, None) if p[0] == 'wait_vm' else emit(None, n)
            else: raise ValueError(x.text)
            continue
        if not on:
            out.append(x); continue
        if x.op == 's_waitcnt':
            for c, n in WAIT_RE.findall(x.text.split(';')[0]):
                n = int(n)
                if c == 'vmcnt': vm = vm[max(0, len(vm) - n):] if n else []
                else: lg = lg[max(0, len(lg) - n):] if n else []
            out.append(x); continue
        touched = vec(x.uses | x.defs)
        nv = nl = None
        if touched:
            idx = [i for i, (d, t) in enumerate(vm) if d & touched]
            if idx: nv = len(vm) - 1 - idx[-1]
            idx = [i for i, (d, t) in enumerate(lg) if d & touched]
            if idx: nl = len(lg) - 1 - idx[-1]
        if x.cls == 'vmem' and nv is not None and not any(d & vec(x.uses) for d, t in vm): nv = None
        if x.cls == 'ds' and nl is not None and not any(d & vec(x.uses) for d, t in lg): nl = None
        emit(nv, nl)
        out.append(x)
        if x.cls == 'vmem':
            vm.append((vec(x.defs), x.tag))
            if len(vm) > 63:
                pass
        elif x.cls == 'ds': lg.append((vec(x.defs), x.tag))
    return out

class Asm:
    def __init__(self): self.lines = []
    def __call__(self, s):
        for l in s.split('\n'):
            l = l.strip()
            if l: self.lines.append(l)
    def finish(self):
        ins = [Ins(l) for l in self.lines]
        ins = auto_waits(ins)
        ins = fix_hazards_fast(ins)
        txt = []
        for x in ins:
            t = re.sub(r'\s*;\s*@tag\s+\S+', '', x.text)
            txt.append(t if x.cls in ('label', 'dir') else '    ' + t)
        return '\n'.join(txt) + '\n'
```

```python
import struct
NAME = "parallel_sum__linear_attn_block__dense_activation_silu__prompt"
def f2u(x): return struct.unpack('<I', struct.pack('<f', x))[0]
def hx(x): return '0x%08x' % f2u(x)
LOG2E = 1.4426950408889634
LN2 = 0.6931471805599453
HEADER = """; Kernarg layout for this problem (72 bytes, ptrs only, base s[0:1]):
"""
def kd(name, vgpr=256, sgpr=102, accum=256):
    return f""".amdhsa_kernel {name}
  .amdhsa_next_free_vgpr {vgpr}
  .amdhsa_next_free_sgpr {sgpr}
  .amdhsa_accum_offset {accum}
  .amdhsa_group_segment_fixed_size 0
  .amdhsa_kernarg_size 72
  .amdhsa_user_sgpr_count 2
  .amdhsa_user_sgpr_kernarg_segment_ptr 1
  .amdhsa_system_sgpr_workgroup_id_x 1
.end_amdhsa_kernel
"""
def entry(name):
    return f""".globl {name}
.p2align 8
.type {name},@function
{name}:
"""
def vr(b, n=1): return f"v{b}" if n == 1 else f"v[{b}:{b+n-1}]"
def sr(b, n=1): return f"s{b}" if n == 1 else f"s[{b}:{b+n-1}]"
```

```python
import sys
from asmlib import Asm
from common import *

A2_BYTES = 64*144*1024
KV_OFF = A2_BYTES
KV_SLOT = 4608
WS_USED = KV_OFF + 8*16*KV_SLOT

MF = "v_mfma_f32_32x32x16_bf16"

def srd(a, d, base, size):
    a(f"""s_mov_b32 s{d}, s{base}
    s_mov_b32 s{d+1}, s{base+1}
    s_mov_b32 s{d+2}, {size}
    s_mov_b32 s{d+3}, 0x20000""")

def k1():
    a = Asm()
    X = 128; ACC = 64; WF = 96; C0 = 112; PK = 32; VV = 48
    a("""s_cmp_ge_u32 s2, 256
    s_cbranch_scc1 K1_END
    s_load_dwordx4 s[4:7], s[0:1], 0
    s_load_dwordx2 s[8:9], s[0:1], 32
    s_load_dwordx4 s[12:15], s[0:1], 56
    v_lshrrev_b32 v1, 6, v0
    v_and_b32 v0, 63, v0
    v_readfirstlane_b32 s40, v1
    s_and_b32 s41, s2, 7
    s_lshr_b32 s42, s2, 3
    s_and_b32 s43, s41, 3
    s_lshl_b32 s43, s43, 2
    s_and_b32 s44, s42, 3
    s_add_u32 s43, s43, s44          ; s43 = i (M tile)
    s_lshr_b32 s44, s42, 2           ; s = 0..7
    s_lshr_b32 s45, s44, 2           ; s45 = type (0 A, 1 F)
    s_and_b32 s44, s44, 3
    s_lshr_b32 s41, s41, 2
    s_lshl_b32 s41, s41, 2
    s_add_u32 s44, s44, s41          ; s44 = idx 0..7
    s_waitcnt lgkmcnt(0)""")
    srd(a, 16, 4, 2048*1024)
    srd(a, 28, 14, WS_USED)
    a(f"""s_cmp_eq_u32 s45, 0
    s_cselect_b32 s20, s6, s8
    s_cselect_b32 s21, s7, s9
    s_mov_b32 s47, {512*3072}
    s_cselect_b32 s22, s47, {512*3584}
    s_mov_b32 s23, 0x20000
    s_movk_i32 s47, 3072
    s_cselect_b32 s46, s47, 3584""")
    a("""v_lshrrev_b32 v1, 3, v0          ; l/8
    v_and_b32 v2, 7, v0               ; l%8
    v_lshrrev_b32 v3, 4, v0           ; l>>4
    v_xor_b32 v4, v2, v3
    v_lshlrev_b32 v4, 4, v4
    v_lshl_add_u32 v4, v1, 10, v4     ; q even
    v_xor_b32 v5, 64, v4              ; q odd
    s_lshl_b32 s47, s43, 2
    s_add_u32 s47, s47, s40           ; tb = i*4 + w
    s_lshl_b32 s48, s47, 15
    s_lshl_b32 s49, s40, 15""")
    for cc in range(8):
        for q in range(4):
            a(f"""s_add_u32 m0, s49, {cc*4096+q*1024}
            s_add_u32 s50, s48, {q*8192+cc*128}
            buffer_load_dwordx4 v{4+(q&1)}, s[16:19], s50 offen lds""")
    a("""v_and_b32 v6, 31, v0              ; r
    v_lshrrev_b32 v7, 5, v0           ; h
    v_lshrrev_b32 v12, 1, v6
    v_and_b32 v12, 7, v12
    v_lshlrev_b32 v13, 7, v6
    v_add_u32 v13, s49, v13""")
    for t in range(4):
        a(f"""v_add_u32 v14, {2*t}, v7
        v_xor_b32 v14, v14, v12
        v_lshl_add_u32 v{8+t}, v14, 4, v13""")
    a("""v_lshrrev_b32 v14, 4, v0
    v_and_b32 v14, 1, v14
    v_lshlrev_b32 v14, 2, v14
    v_xor_b32 v14, v14, v2
    v_lshlrev_b32 v14, 4, v14
    v_mul_lo_u32 v16, v1, s46
    v_add_u32 v16, v16, v14
    v_lshrrev_b32 v14, 2, v0
    v_mul_lo_u32 v17, v14, s46
    v_and_b32 v14, 3, v0
    v_lshl_add_u32 v17, v14, 4, v17""")
    a("""v_lshrrev_b32 v14, 2, v0
    v_and_b32 v14, 3, v14             ; r
    v_lshl_add_u32 v15, v7, 3, v14    ; 8h+r
    v_lshrrev_b32 v23, 4, v0
    v_and_b32 v23, 1, v23             ; colhalf
    v_and_b32 v24, 3, v0              ; c4
    v_lshlrev_b32 v25, 5, v23
    v_lshl_add_u32 v25, v24, 3, v25   ; colhalf*32 + c4*8
    v_lshl_add_u32 v22, v15, 6, v25
    v_add_u32 v22, 0x10000, v22
    v_lshrrev_b32 v14, 1, v14
    v_lshlrev_b32 v14, 6, v14
    v_xor_b32 v25, v25, v14
    v_lshl_add_u32 v18, v15, 7, v25
    v_xor_b32 v19, 64, v18
    v_add_u32 v20, 0x10000, v18
    v_add_u32 v21, 0x10000, v19
    v_lshlrev_b32 v26, 4, v0          ; lane*16""")
    a("""v_mov_b32 v28, 0
    v_mov_b32 v29, 0
    v_mov_b32 v30, 0
    v_mov_b32 v31, 0
    s_mov_b32 s51, 0x3f803f80""")
    for cc in range(8):
        a(f"@wait_vm x{cc}")
        for t in range(4):
            a(f"ds_read_b128 {vr(X+16*cc+4*t,4)}, v{8+t} offset:{cc*4096}")
        for d in range(16):
            r = X+16*cc+d
            a(f"v_dot2_f32_bf16 v{28+(d&1)}, v{r}, s51, v{28+(d&1)}")
            a(f"v_dot2_f32_bf16 v{30+(d&1)}, v{r}, v{r}, v{30+(d&1)}")
    a("s_barrier")
    a(f"""s_lshl_b32 s56, s44, 7
    s_mul_i32 s57, s44, 448
    s_and_b32 s58, s44, 1
    s_lshl_b32 s59, s58, 6
    s_add_u32 s59, s59, s57           ; fb
    s_cmp_eq_u32 s58, 0
    s_cselect_b32 s58, 384, 0
    s_add_u32 s55, s57, s58           ; hb
    s_add_u32 s60, s56, 1024
    s_add_u32 s61, s56, 2048
    s_add_u32 s62, s59, 128
    s_add_u32 s63, s59, 256
    s_cmp_eq_u32 s45, 0
    s_cselect_b32 s52, s60, s59
    s_cselect_b32 s53, s61, s62
    s_cselect_b32 s54, s56, s63
    s_mul_i32 s64, s40, s46
    s_lshl_b32 s64, s64, 7            ; w*128*stride
    s_lshl_b32 s65, s46, 3            ; 8*stride
    s_lshl_b32 s66, s40, 14
    s_lshl_b32 s67, s40, 13           ; (half)""")
    def dma_full(un):
        a(f"s_add_u32 s50, s64, s{52+un}")
        for n in range(16):
            a(f"""s_add_u32 m0, s66, {(un&1)*65536+n*1024}
            s_nop 0
            buffer_load_dwordx4 v16, s[20:23], s50 offen lds
            s_add_u32 s50, s50, s65""")
    def dma_half():
        a(f"""s_add_u32 s50, s64, s55
        s_lshl_b32 s68, s65, 1""")
        for n in range(8):
            a(f"""s_add_u32 m0, s67, {65536+n*1024}
            s_nop 0
            buffer_load_dwordx4 v17, s[20:23], s50 offen lds ; @tag w3
            s_add_u32 s50, s50, s68""")
    dma_full(0); dma_full(1)
    a(f"""v_add_f32 v28, v28, v29
    v_add_f32 v30, v30, v31
    v_mov_b32 v29, v28
    v_mov_b32 v31, v30
    v_permlane32_swap_b32 v28, v29
    v_permlane32_swap_b32 v30, v31
    v_add_f32 v28, v28, v29
    v_add_f32 v30, v30, v31
    v_mul_f32 v28, {hx(1/512)}, v28       ; mean
    v_mul_f32 v30, {hx(1/512)}, v30
    v_fma_f32 v30, -v28, v28, v30         ; var
    v_max_f32 v30, 0, v30
    v_add_f32 v30, {hx(1e-5)}, v30
    v_rsq_f32 v30, v30
    s_cmp_eq_u32 s45, 0
    s_mov_b32 s69, {hx(LOG2E)}
    s_cselect_b32 s69, s69, {hx(-LOG2E)}
    v_mul_f32 v30, s69, v30               ; a
    v_mov_b32 v31, v30
    v_mul_f32 v28, v28, v30
    v_sub_f32 v28, 0, v28                 ; b
    v_mov_b32 v29, v28
    s_mov_b32 s70, 0xffff0000""")
    for d in range(128):
        r = X+d; t = 64 + 2*(d & 7)
        a(f"""v_lshlrev_b32 v{t}, 16, v{r}
        v_and_b32 v{t+1}, s70, v{r}
        v_pk_fma_f32 {vr(t,2)}, {vr(t,2)}, v[30:31], v[28:29]
        v_cvt_pk_bf16_f32 v{r}, v{t}, v{t+1}""")

    def unit(un, w_is_a, cinit, half=False):
        a(f"@wait_vm w{un}")
        a("s_barrier")
        nb = 1 if half else 2
        steps = [(ks, b) for ks in range(32) for b in range(nb)]
        def rd(n):
            ks, b = steps[n]
            f = WF + 4*(n % 4)
            if half:
                a(f"ds_read_b64_tr_b16 {vr(f,2)}, v22 offset:{ks*1024}")
                a(f"ds_read_b64_tr_b16 {vr(f+2,2)}, v22 offset:{ks*1024+256}")
            else:
                ad = 18 + 2*(un & 1) + b
                a(f"ds_read_b64_tr_b16 {vr(f,2)}, v{ad} offset:{ks*2048}")
                a(f"ds_read_b64_tr_b16 {vr(f+2,2)}, v{ad} offset:{ks*2048+512}")
        for n in range(3): rd(n)
        for n, (ks, b) in enumerate(steps):
            f = WF + 4*(n % 4); acc = ACC + 16*b
            c = (vr(C0,16) if cinit else "0") if ks == 0 else vr(acc,16)
            A, B = (vr(f,4), vr(X+4*ks,4)) if w_is_a else (vr(X+4*ks,4), vr(f,4))
            a(f"{MF} {vr(acc,16)}, {A}, {B}, {c}")
            if n + 3 < len(steps): rd(n+3)
        a("s_barrier")
    a("""s_mul_i32 s71, s47, 144
    s_lshl_b32 s71, s71, 10            ; tb*144*1024
    s_cmp_eq_u32 s45, 0
    s_cbranch_scc1 K1_A""")
    sav = list(a.lines)
    def silu(nb, colreg):
        a(f"""s_lshr_b32 s72, s{colreg}, 5
        s_lshl_b32 s72, s72, 10
        s_add_u32 s72, s72, s71""")
        for b in range(nb):
            for s in range(2):
                for e in range(8):
                    r = ACC+16*b+8*s+e
                    a(f"v_exp_f32 v{32+e}, v{r}")
                for e in range(8): a(f"v_add_f32 v{32+e}, 1.0, v{32+e}")
                for e in range(8): a(f"v_rcp_f32 v{32+e}, v{32+e}")
                for e in range(8): a(f"v_mul_f32 v{32+e}, v{32+e}, v{ACC+16*b+8*s+e}")
                o = 40 + 4*((2*b+s) & 1)
                for e in range(4): a(f"v_cvt_pk_bf16_f32 v{o+e}, v{32+2*e}, v{33+2*e}")
                a(f"buffer_store_dwordx4 {vr(o,4)}, v26, s[28:31], s72 offen offset:{(2*b+s)*1024}")
    unit(0, True, False); dma_full(2); silu(2, 52)
    unit(1, True, False); dma_half(); silu(2, 53)
    unit(2, True, False); silu(2, 54)
    unit(3, True, False, half=True); silu(1, 55)
    a("s_endpgm")
    a("K1_A:")
    a("@reset")
    a("s_waitcnt vmcnt(0)")
    for e in range(16): a(f"v_mov_b32 v{C0+e}, {hx(1e-6*LOG2E)}")
    a(f"s_mov_b32 s73, {hx(LN2)}")
    def phi(dst):
        for b in range(2):
            for s in range(2):
                base = ACC+16*b+8*s
                for e in range(8): a(f"v_exp_f32 v{8+e}, v{base+e} clamp")
                for e in range(8): a(f"v_max_f32 v{base+e}, v{base+e}, v{C0}")
                for e in range(8): a(f"v_fma_f32 v{8+e}, v{base+e}, s73, v{8+e}")
                for e in range(4): a(f"v_cvt_pk_bf16_f32 v{dst+8*b+4*s+e}, v{8+2*e}, v{9+2*e}")
    unit(0, False, True); dma_full(2); phi(PK)
    unit(1, False, False)
    for e in range(16): a(f"v_cvt_pk_bf16_f32 v{VV+e}, v{ACC+2*e}, v{ACC+2*e+1}")
    for e in range(4): a(f"v_mov_b32 v{8+e}, 0x3f803f80")
    for b in range(2):
        a(f"{MF} {vr(ACC+16*b,16)}, {vr(PK+8*b,4)}, {vr(VV+8*b,4)}, 0")
        a(f"{MF} {vr(ACC+16*b,16)}, {vr(PK+8*b+4,4)}, {vr(VV+8*b+4,4)}, {vr(ACC+16*b,16)}")
    for b in range(2):
        a(f"{MF} {vr(WF,16)}, v[8:11], {vr(PK+8*b,4)}, 0")
        a(f"{MF} {vr(WF,16)}, v[8:11], {vr(PK+8*b+4,4)}, {vr(WF,16)}")
        a(f"v_mov_b32 v{12+b}, v{WF}")
    KVS = 131072
    a(f"""v_cmp_gt_u32 vcc, 32, v0
    v_cndmask_b32 v12, v13, v12, vcc
    v_and_b32 v13, 16, v0
    v_cmp_eq_u32 s[74:75], 0, v13             ; j<16""")
    for b in range(2):
        for e in range(8):
            a(f"v_cndmask_b32 v{VV+8*b+e}, v{ACC+16*b+8+e}, v{ACC+16*b+e}, s[74:75]")
    a(f"""s_lshl_b32 s76, s40, 12
    s_add_u32 s76, s76, {KVS}
    v_add_u32 v13, s76, v26
    s_lshl_b32 s76, s40, 8
    s_add_u32 s76, s76, {KVS+16384}
    v_lshl_add_u32 v14, v0, 2, s76""")
    for q in range(4): a(f"ds_write_b128 v13, {vr(VV+4*q,4)} offset:{q*1024}")
    a("""ds_write_b32 v14, v12
    s_waitcnt lgkmcnt(0)
    s_barrier""")
    a(f"""s_lshl_b32 s76, s40, 10
    s_add_u32 s76, s76, {KVS}
    v_add_u32 v13, s76, v26
    v_lshlrev_b32 v14, 2, v0
    v_add_u32 v14, {KVS+16384}, v14""")
    for p in range(4): a(f"ds_read_b128 {vr(VV+4*p,4)}, v13 offset:{p*4096}")
    for p in range(4): a(f"ds_read_b32 v{8+p}, v14 offset:{p*256}")
    for e in range(4):
        a(f"v_add_f32 v{VV+e}, v{VV+e}, v{VV+4+e}")
        a(f"v_add_f32 v{VV+8+e}, v{VV+8+e}, v{VV+12+e}")
    for e in range(4): a(f"v_add_f32 v{VV+e}, v{VV+e}, v{VV+8+e}")
    a(f"""v_add_f32 v8, v8, v9
    v_add_f32 v10, v10, v11
    v_add_f32 v8, v8, v10
    s_lshl_b32 s76, s44, 4
    s_mul_i32 s77, s76, {KV_SLOT}
    s_add_u32 s77, s77, {KV_OFF}
    s_mul_i32 s78, s43, {KV_SLOT}
    s_add_u32 s78, s78, s77
    s_lshl_b32 s79, s40, 10
    s_add_u32 s80, s78, s79
    buffer_store_dwordx4 {vr(VV,4)}, v26, s[28:31], s80 offen sc1
    v_lshlrev_b32 v14, 2, v0
    s_add_u32 s80, s78, 4096
    buffer_store_dword v8, v14, s[28:31], s80 offen sc1
    s_waitcnt vmcnt(0)
    s_barrier
    s_cmp_eq_u32 s40, 0
    s_cbranch_scc0 K1_A_NOSIG
    s_lshl_b32 s76, s44, 2
    v_mov_b32 v8, s76
    v_mov_b32 v9, 1
    s_mov_b64 exec, 1
    global_atomic_add v8, v9, s[12:13]
    s_mov_b64 exec, -1
    K1_A_NOSIG:""")
    unit(2, True, True); phi(PK)
    a(f"""s_lshl_b32 s76, s44, 2
    v_mov_b32 v8, s76
    s_mov_b32 s81, 0
    @off
    K1_A_POLL:
    global_load_dword v9, v8, s[12:13] sc1
    s_waitcnt vmcnt(0)
    v_readfirstlane_b32 s76, v9
    s_cmp_ge_u32 s76, 16
    s_cbranch_scc1 K1_A_GO
    s_add_u32 s81, s81, 1
    s_cmp_lt_u32 s81, 0x40000
    s_cbranch_scc1 K1_A_POLL
    K1_A_GO:
    @on
    @reset
    s_barrier
    s_add_u32 s80, s77, s79""")
    for p in range(16):
        a(f"buffer_load_dwordx4 {vr(X+4*p,4)}, v26, s[28:31], s80 offen sc1")
        a(f"s_add_u32 s80, s80, {KV_SLOT}")
    a(f"""v_lshrrev_b32 v8, 2, v0
    v_mul_u32_u24 v8, {KV_SLOT}, v8
    v_and_b32 v9, 3, v0
    v_lshl_add_u32 v8, v9, 4, v8
    s_lshl_b32 s76, s40, 6
    s_add_u32 s80, s77, s76
    s_add_u32 s80, s80, 4096
    buffer_load_dwordx4 v[12:15], v8, s[28:31], s80 offen sc1""")
    for st in (8, 4, 2, 1):
        for p in range(st):
            for e in range(4): a(f"v_add_f32 v{X+4*p+e}, v{X+4*p+e}, v{X+4*(p+st)+e}")
    a(f"v_cvt_pk_bf16_f32 v{X}, v{X}, v{X+1}")
    a(f"v_cvt_pk_bf16_f32 v{X+1}, v{X+2}, v{X+3}")
    for e in range(4): a(f"v_add_f32 v{12+e}, v{12+e}, v{12+e} row_ror:4 row_mask:0xf bank_mask:0xf")
    for e in range(4): a(f"v_add_f32 v{12+e}, v{12+e}, v{12+e} row_ror:8 row_mask:0xf bank_mask:0xf")
    for sw in ("v_permlane16_swap_b32", "v_permlane32_swap_b32"):
        for e in range(4): a(f"v_mov_b32 v{8+e}, v{12+e}")
        for e in range(4): a(f"{sw} v{8+e}, v{12+e}")
        for e in range(4): a(f"v_add_f32 v{12+e}, v{12+e}, v{8+e}")
    IMG = KVS + 17408; ZIM = IMG + 2048
    a(f"""v_cvt_pk_bf16_f32 v12, v12, v13
    v_cvt_pk_bf16_f32 v13, v14, v15
    v_and_b32 v8, 1, v0
    v_lshlrev_b32 v8, 4, v8
    v_and_b32 v9, 2, v0
    v_lshl_add_u32 v8, v9, 2, v8
    s_lshl_b32 s76, s40, 5
    s_add_u32 s76, s76, {ZIM}
    v_add_u32 v8, s76, v8
    ds_write_b64 v8, v[12:13]
    s_lshr_b32 s76, s40, 1
    s_lshl_b32 s76, s76, 10
    s_and_b32 s80, s40, 1
    s_lshl_b32 s80, s80, 3
    s_add_u32 s76, s76, s80
    s_add_u32 s76, s76, {IMG}
    v_add_u32 v9, s76, v26
    ds_write_b64 v9, {vr(X,2)}
    s_waitcnt lgkmcnt(0)
    s_barrier
    v_add_u32 v8, {IMG}, v26
    v_lshlrev_b32 v9, 4, v7
    v_add_u32 v9, {ZIM}, v9""")
    for hd in range(4):
        b = hd >> 1
        a(f"""v_add_u32 v10, {b*1024}, v8
        v_add_u32 v11, {hd*32}, v9""")
        if hd & 1 == 0: a("v_cndmask_b32 v10, v11, v10, s[74:75]")
        else: a("v_cndmask_b32 v10, v10, v11, s[74:75]")
        a(f"ds_read_b128 {vr(WF+4*hd,4)}, v10")
    a(f"""s_lshl_b32 s72, s44, 2
    s_add_u32 s72, s72, 112
    s_lshl_b32 s72, s72, 10
    s_add_u32 s72, s72, s71""")
    for hd in range(4):
        a(f"{MF} {vr(X+16*hd,16)}, {vr(WF+4*hd,4)}, {vr(PK+4*hd,4)}, 0")
    for hd in range(4):
        num = X+16*hd+8*(hd & 1); den = X+16*hd+8*(1-(hd & 1))
        a(f"""v_add_f32 v8, {hx(1e-6)}, v{den}
        v_rcp_f32 v8, v8""")
        for e in range(8): a(f"v_mul_f32 v{num+e}, -v{num+e}, v8")
        for e in range(4): a(f"v_cvt_pk_bf16_f32 v{VV+4*hd+e}, v{num+2*e}, v{num+2*e+1}")
        a(f"buffer_store_dwordx4 {vr(VV+4*hd,4)}, v26, s[28:31], s72 offen offset:{hd*1024}")
    a("K1_END:")
    a("s_endpgm")
    return a.finish()

def k2():
    a = Asm()
    ACC = 64; HF = 128; WF = 32; XR = 48
    a("""s_cmp_ge_u32 s2, 256
    s_cbranch_scc1 K2_END
    s_load_dwordx2 s[4:5], s[0:1], 0
    s_load_dwordx2 s[6:7], s[0:1], 16
    s_load_dwordx4 s[8:11], s[0:1], 40
    s_load_dwordx2 s[12:13], s[0:1], 64
    v_lshrrev_b32 v1, 6, v0
    v_and_b32 v0, 63, v0
    v_readfirstlane_b32 s40, v1
    s_and_b32 s41, s2, 7
    s_lshr_b32 s42, s2, 3
    s_and_b32 s43, s42, 3
    s_lshl_b32 s41, s41, 2
    s_add_u32 s43, s43, s41
    s_lshr_b32 s44, s42, 2
    s_waitcnt lgkmcnt(0)""")
    srd(a, 16, 4, 2048*1024)
    srd(a, 20, 6, 512*1024)
    srd(a, 24, 8, 1792*1024)
    srd(a, 28, 10, 2048*1024)
    srd(a, 32, 12, WS_USED)
    a("""v_lshrrev_b32 v1, 3, v0
    v_and_b32 v2, 7, v0
    v_lshrrev_b32 v3, 4, v0
    v_and_b32 v3, 1, v3
    v_lshlrev_b32 v4, 2, v3
    v_xor_b32 v4, v4, v2
    v_lshlrev_b32 v4, 4, v4
    v_lshl_add_u32 v4, v1, 10, v4
    v_lshrrev_b32 v7, 5, v0            ; h
    v_lshrrev_b32 v14, 2, v0
    v_and_b32 v14, 3, v14              ; r
    v_lshl_add_u32 v15, v7, 2, v14     ; 4h+r
    v_and_b32 v24, 3, v0
    v_lshlrev_b32 v25, 5, v3
    v_lshl_add_u32 v25, v24, 3, v25
    v_lshrrev_b32 v14, 1, v14
    v_lshlrev_b32 v14, 6, v14
    v_xor_b32 v25, v25, v14
    v_lshl_add_u32 v18, v15, 7, v25
    s_lshl_b32 s45, s40, 14
    v_add_u32 v18, s45, v18
    s_and_b32 s46, s40, 1
    s_lshl_b32 s47, s46, 6
    v_xor_b32 v18, s47, v18
    v_xor_b32 v19, 64, v18
    v_lshlrev_b32 v26, 4, v0
    s_lshr_b32 s48, s40, 1             ; w>>1
    s_lshl_b32 s49, s43, 1
    s_add_u32 s50, s49, s48            ; tb(theta=0)
    s_xor_b32 s51, s50, 1              ; tb(theta=1)
    s_mul_i32 s52, s50, 147456
    s_mul_i32 s53, s51, 147456
    s_mul_i32 s54, s40, 28672
    s_add_u32 s55, s52, s54
    s_add_u32 s56, s53, s54
    s_lshl_b32 s54, s40, 13
    s_add_u32 s54, s54, 114688         ; (112 + 8w)*1024
    s_add_u32 s57, s52, s54
    s_add_u32 s58, s53, s54
    s_lshl_b32 s59, s44, 7
    s_mul_i32 s60, s40, 458752         ; 28*16 rows *1024
    s_add_u32 s60, s60, s59
    s_lshl_b32 s61, s40, 17            ; 8*16 rows*1024
    s_add_u32 s61, s61, s59""")
    a(f"""v_and_b32 v5, 31, v0
    v_lshlrev_b32 v5, 10, v5
    v_lshl_add_u32 v5, v7, 4, v5
    s_lshl_b32 s62, s50, 15
    s_add_u32 s62, s62, s59
    s_add_u32 s62, s62, s47
    buffer_load_dwordx4 {vr(XR,4)}, v5, s[16:19], s62 offen
    buffer_load_dwordx4 {vr(XR+4,4)}, v5, s[16:19], s62 offen offset:32""")
    NS = 36; PF = 6; R = 8
    def issue(s):
        h = s < 28
        k = s if h else s - 28
        wsrd = "s[24:27]" if h else "s[20:23]"
        wb = 60 if h else 61
        for half in range(2):
            a(f"""s_add_u32 m0, s45, {(s%R)*2048+half*1024}
            s_add_u32 s63, s{wb}, {(k*16+half*8)*1024}
            buffer_load_dwordx4 v4, {wsrd}, s63 offen lds ; @tag b{s}""")
        for th in range(2):
            a(f"""s_add_u32 s63, s{(55 if h else 57)+th}, {k*1024}
            buffer_load_dwordx4 {vr(HF+8*(s%R)+4*th,4)}, v26, s[32:35], s63 offen""")
    def rd(s):
        a(f"@wait_vm b{s}")
        for be in range(2):
            f = WF + 8*(s & 1) + 4*be
            a(f"ds_read_b64_tr_b16 {vr(f,2)}, v{18+be} offset:{(s%R)*2048}")
            a(f"ds_read_b64_tr_b16 {vr(f+2,2)}, v{18+be} offset:{(s%R)*2048+1024}")
    for s in range(PF): issue(s)
    rd(0)
    for s in range(NS):
        if s + PF < NS: issue(s + PF)
        if s + 1 < NS: rd(s + 1)
        for th in range(2):
            for be in range(2):
                acc = ACC + 16*(2*th+be)
                c = "0" if s == 0 else vr(acc,16)
                a(f"{MF} {vr(acc,16)}, {vr(WF+8*(s&1)+4*be,4)}, {vr(HF+8*(s%R)+4*th,4)}, {c}")
    RED = 65536
    for tau in range(1, 4):
        a(f"""s_xor_b32 s63, s40, {tau}
        s_mul_i32 s63, s63, 12288
        s_add_u32 s63, s63, {RED+(tau-1)*4096}
        v_add_u32 v8, s63, v26""")
        for q in range(4): a(f"ds_write_b128 v8, {vr(ACC+16*tau+4*q,4)} offset:{q*1024}")
    a(f"""s_mul_i32 s63, s40, 12288
    s_add_u32 s63, s63, {RED}
    v_add_u32 v8, s63, v26
    s_waitcnt lgkmcnt(0)
    s_barrier""")
    for tau in range(1, 4):
        for q in range(4): a(f"ds_read_b128 {vr(ACC+16*tau+4*q,4)}, v8 offset:{(tau-1)*4096+q*1024}")
    for p in range(2):
        a(f"v_permlane32_swap_b32 v{XR+4*p}, v{XR+4*p+2}")
        a(f"v_permlane32_swap_b32 v{XR+4*p+1}, v{XR+4*p+3}")
    for e in range(16): a(f"v_add_f32 v{ACC+e}, v{ACC+e}, v{ACC+16+e}")
    for e in range(16): a(f"v_add_f32 v{ACC+32+e}, v{ACC+32+e}, v{ACC+48+e}")
    for e in range(16): a(f"v_add_f32 v{ACC+e}, v{ACC+e}, v{ACC+32+e}")
    a(f"""s_mov_b32 s64, {hx(-LN2)}
    s_mov_b32 s65, 0xffff0000""")
    for d in range(8):
        a(f"""v_lshlrev_b32 v8, 16, v{XR+d}
        v_and_b32 v9, s65, v{XR+d}
        v_fma_f32 v8, v{ACC+2*d}, s64, v8
        v_fma_f32 v9, v{ACC+2*d+1}, s64, v9
        v_cvt_pk_bf16_f32 v{XR+d}, v8, v9""")
    for p in range(2):
        a(f"v_permlane32_swap_b32 v{XR+4*p}, v{XR+4*p+2}")
        a(f"v_permlane32_swap_b32 v{XR+4*p+1}, v{XR+4*p+3}")
        a(f"buffer_store_dwordx4 {vr(XR+4*p,4)}, v5, s[28:31], s62 offen offset:{32*p}")
    a("K2_END:")
    a("s_endpgm")
    return a.finish()

def build():
    s = HEADER
    s += "; @launch kernel=pa_kernel grid=(256,1,1) block=(256,1,1) lds=151552\n"
    s += "; @launch kernel=pb_kernel grid=(256,1,1) block=(256,1,1) lds=114688\n"
    s += '.amdgcn_target "amdgcn-amd-amdhsa--gfx950"\n.text\n'
    s += entry("pa_kernel") + k1() + entry("pb_kernel") + k2()
    s += '.section .rodata,"a"\n.p2align 6\n' + kd("pa_kernel") + ".p2align 6\n" + kd("pb_kernel")
    return s
if __name__ == "__main__":
    open(sys.argv[1], "w").write(build())
```

```python
import re

REG_RE = re.compile(r'^-?\|?(?:abs\()?([vas])(?:(\d+)|\[(\d+):(\d+)\])\)?\|?$')

def regs_of(tok):
    tok = tok.strip()
    if tok in ('vcc',): return {('s', 'vcc_lo'), ('s', 'vcc_hi')}
    if tok in ('vcc_lo', 'vcc_hi'): return {('s', tok)}
    if tok == 'exec': return {('s', 'exec_lo'), ('s', 'exec_hi')}
    if tok in ('exec_lo', 'exec_hi'): return {('s', tok)}
    if tok == 'm0': return {('s', 'm0')}
    m = REG_RE.match(tok)
    if not m: return set()
    f = m.group(1)
    if m.group(2) is not None: return {(f, int(m.group(2)))}
    return {(f, i) for i in range(int(m.group(3)), int(m.group(4)) + 1)}

TRANS = ('v_exp_', 'v_log_', 'v_rcp_', 'v_rsq_', 'v_sqrt_', 'v_sin_', 'v_cos_')

class Ins:
    __slots__ = ('text', 'op', 'ops', 'mods', 'cls', 'defs', 'uses', 'srcA', 'srcB', 'srcC', 'passes',
                 'trans', 'dpp', 'tag', 'store_data', 'wide', 'lds_dma', 'label', 'target', 'dot', 'pseudo')
    def __init__(self, text):
        self.text = text
        self.tag = None; self.pseudo = None; self.label = None; self.target = None
        self.defs = set(); self.uses = set(); self.srcA = set(); self.srcB = set(); self.srcC = set()
        self.passes = 0; self.trans = False; self.dpp = False; self.store_data = set(); self.wide = False
        self.lds_dma = False; self.dot = False; self.op = ''; self.ops = []; self.mods = []
        t = text.split(';')[0].strip()
        m = re.search(r';\s*@tag\s+(\S+)', text)
        if m: self.tag = m.group(1)
        if text.strip().startswith('@'):
            self.cls = 'pseudo'; self.pseudo = text.strip()[1:].split(); return
        if not t: self.cls = 'none'; return
        if t.endswith(':'): self.cls = 'label'; self.label = t[:-1]; return
        if t.startswith('.'): self.cls = 'dir'; return
        parts = t.split(None, 1)
        self.op = op = parts[0]
        rest = parts[1] if len(parts) > 1 else ''
        ops = [o.strip() for o in rest.split(',')] if rest else []
        joined = []
        depth = 0
        for o in ops:
            if depth > 0: joined[-1] += ',' + o
            else: joined.append(o)
            depth += o.count('[') - o.count(']')
        ops = joined
        if ops:
            last = ops[-1].split()
            ops[-1] = last[0] if last else ''
            self.mods = last[1:]
        self.ops = ops
        R = regs_of
        if op.startswith('v_mfma'):
            self.cls = 'mfma'
            self.defs = R(ops[0]); self.srcA = R(ops[1]); self.srcB = R(ops[2]); self.srcC = R(ops[3])
            self.uses = self.srcA | self.srcB | self.srcC
            self.passes = 8 if '32x32x16' in op else 4 if '16x16x32' in op else None
            assert self.passes, op
        elif op.startswith('v_'):
            self.cls = 'valu'
            self.trans = op.startswith(TRANS)
            self.dot = op.startswith('v_dot')
            self.dpp = any(x.startswith(('row_', 'quad_perm', 'wave_')) for x in self.mods) or op.endswith('_dpp')
            if op == 'v_nop': return
            if op.startswith('v_permlane') and 'swap' in op:
                self.defs = R(ops[0]) | R(ops[1]); self.uses = set(self.defs)
            elif op.startswith(('v_add_co', 'v_sub_co', 'v_addc_co', 'v_subb_co')):
                self.defs = R(ops[0]) | R(ops[1])
                for o in ops[2:]: self.uses |= R(o)
            else:
                self.defs = R(ops[0])
                for o in ops[1:]: self.uses |= R(o)
                if op.startswith(('v_fmac', 'v_dot2c', 'v_mac', 'v_writelane')) or self.dpp:
                    self.uses |= self.defs
        elif op.startswith('ds_'):
            self.cls = 'ds'
            if op.startswith(('ds_read', 'ds_bpermute', 'ds_permute', 'ds_swizzle')) or '_rtn' in op:
                self.defs = R(ops[0])
                for o in ops[1:]: self.uses |= R(o)
            else:
                for o in ops: self.uses |= R(o)
        elif op.startswith(('buffer_', 'global_')):
            self.cls = 'vmem'
            if op in ('buffer_wbl2', 'buffer_inv'): return
            if op.startswith('buffer_load'):
                if 'lds' in self.mods:
                    self.lds_dma = True
                    for o in ops: self.uses |= R(o)
                    self.uses |= R('m0')
                else:
                    self.defs = R(ops[0])
                    for o in ops[1:]: self.uses |= R(o)
            elif op.startswith('buffer_store'):
                for o in ops: self.uses |= R(o)
                self.store_data = R(ops[0]); self.wide = op.endswith(('x3', 'x4'))
            elif op.startswith('buffer_atomic'):
                for o in ops: self.uses |= R(o)
                if 'sc0' in self.mods: self.defs = R(ops[0])
            elif op.startswith('global_load'):
                self.defs = R(ops[0])
                for o in ops[1:]: self.uses |= R(o)
            elif op.startswith('global_store'):
                for o in ops: self.uses |= R(o)
                self.store_data = R(ops[1]); self.wide = op.endswith(('x3', 'x4'))
            elif op.startswith('global_atomic'):
                if 'sc0' in self.mods:
                    self.defs = R(ops[0])
                    for o in ops[1:]: self.uses |= R(o)
                else:
                    for o in ops: self.uses |= R(o)
            else: raise ValueError(op)
        elif op.startswith('s_'):
            self.cls = 'salu'
            if op.startswith(('s_load', 's_memtime', 's_memrealtime', 's_buffer_load')):
                self.cls = 'smem'
                self.defs = R(ops[0])
                for o in ops[1:]: self.uses |= R(o)
            elif op.startswith(('s_branch', 's_cbranch')):
                self.cls = 'branch'; self.target = ops[0]
                if 'vcc' in op: self.uses = R('vcc')
                if 'exec' in op: self.uses = R('exec')
            elif op.startswith(('s_waitcnt', 's_nop', 's_barrier', 's_endpgm', 's_setprio', 's_sleep')):
                pass
            elif op.startswith(('s_cmp', 's_bitcmp')):
                for o in ops: self.uses |= R(o)
            else:
                self.defs = R(ops[0])
                for o in ops[1:]: self.uses |= R(o)
                if 'saveexec' in op: self.defs |= R('exec'); self.uses |= R('exec')
                if op.startswith(('s_addk', 's_mulk')): self.uses |= self.defs
        else:
            raise ValueError('cannot parse: ' + text)

    def states(self):
        if self.cls in ('none', 'label', 'dir', 'pseudo'): return 0
        if self.op == 's_nop': return int(self.ops[0], 0) + 1
        return 1

def vec(s): return {r for r in s if r[0] in 'va'}
def sca(s): return {r for r in s if r[0] == 's'}

def need(p, c):
    n = 0
    if p.cls == 'valu':
        vd = vec(p.defs); sd = sca(p.defs)
        if c.cls == 'mfma' and vd & c.uses: n = max(n, 2)
        if c.cls == 'valu':
            if p.trans and vd & c.uses: n = max(n, 1)
            if c.op.startswith(('v_readfirstlane', 'v_readlane')) and vd & c.uses: n = max(n, 1)
            if c.op.startswith('v_permlane') and vd & c.uses: n = max(n, 2)
            if c.dpp and vd & c.uses: n = max(n, 2)
            if sd & c.uses:
                n = max(n, 4 if c.op.startswith(('v_readlane', 'v_writelane', 'v_div_fmas')) else 2)
            if c.op.startswith('v_cndmask') and len(c.ops) == 3 and sd & regs_of('vcc'): n = max(n, 2)
        if c.cls == 'vmem' and sd & c.uses: n = max(n, 5)
        if p.dot:
            if c.cls in ('valu', 'mfma', 'vmem', 'ds'):
                if c.op == p.op:
                    ab = set()
                    for o in c.ops[1:3]: ab |= regs_of(o)
                    if vd & ab: n = max(n, 3)
                elif vd & (c.uses | c.defs): n = max(n, 3)
        if p.trans and c.cls in ('vmem', 'ds') and vd & c.uses: n = max(n, 1)
    if p.cls == 'mfma':
        P = p.passes
        if c.cls == 'mfma':
            if p.defs & (c.srcA | c.srcB): n = max(n, P + 4)
            if p.defs & c.srcC and not (p.defs == c.srcC and c.passes == P): n = max(n, P + 2)
            if p.defs & c.defs and not (p.defs == c.defs and c.passes == P): n = max(n, P + 2)
        elif c.cls in ('valu', 'vmem', 'ds'):
            if p.defs & (c.uses | c.defs): n = max(n, P + 4)
            if p.srcC & c.defs: n = max(n, P - 1)
    if p.cls == 'vmem' and p.wide and p.store_data & c.defs:
        n = max(n, 2)
    if p.cls == 'salu' and ('s', 'm0') in p.defs and c.lds_dma: n = max(n, 1)
    return n

LOOK = 20

def fix_hazards_fast(ins):
    for _ in range(50):
        labels = {x.label: i for i, x in enumerate(ins) if x.cls == 'label'}
        srcs = {}
        for i, x in enumerate(ins):
            if x.cls == 'branch': srcs.setdefault(labels[x.target], []).append(i)
        extra = {}
        for i, c in enumerate(ins):
            if c.cls not in ('valu', 'mfma', 'vmem', 'ds'): continue
            worst = 0
            stack = [(i - 1, 0)]
            seen = set()
            while stack:
                j, d = stack.pop()
                while j >= 0 and d < LOOK:
                    if (j, d) in seen: break
                    seen.add((j, d))
                    p = ins[j]
                    if p.cls == 'label':
                        for s in srcs.get(j, []): stack.append((s, d))
                    else:
                        n = need(p, c)
                        if n - d > worst: worst = n - d
                        d += p.states()
                    d += extra.get(j, 0)
                    j -= 1
            if worst > 0: extra[i] = worst
        if not extra: return ins
        out = []
        for i, c in enumerate(ins):
            if i in extra: out.append(Ins(f's_nop {extra[i] - 1}'))
            out.append(c)
        ins = out
    raise RuntimeError('hazard fixing did not converge')

WAIT_RE = re.compile(r'(vmcnt|lgkmcnt)\((\d+)\)')

def auto_waits(ins):
    out = []
    vm = []
    lg = []
    on = True
    saved = {}
    def emit(nv, nl):
        nonlocal vm, lg
        parts = []
        if nv is not None:
            nv = min(nv, 63); parts.append(f'vmcnt({nv})'); vm = vm[len(vm) - nv:] if nv else []
        if nl is not None:
            nl = min(nl, 15); parts.append(f'lgkmcnt({nl})'); lg = lg[len(lg) - nl:] if nl else []
        if parts: out.append(Ins('s_waitcnt ' + ' '.join(parts)))
    for x in ins:
        if x.cls == 'pseudo':
            p = x.pseudo
            if p[0] == 'reset': vm = []; lg = []
            elif p[0] == 'off': on = False
            elif p[0] == 'on': on = True
            elif p[0] == 'throttle':
                n = int(p[1])
                if len(vm) > n: emit(n, None)
            elif p[0] == 'save': saved[p[1]] = (list(vm), list(lg))
            elif p[0] == 'restore': vm, lg = list(saved[p[1]][0]), list(saved[p[1]][1])
            elif p[0] in ('wait_vm', 'wait_lgkm'):
                q = vm if p[0] == 'wait_vm' else lg
                idx = [i for i, (d, t) in enumerate(q) if t in p[1:]]
                if idx:
                    n = len(q) - 1 - idx[-1]
                    emit(n, None) if p[0] == 'wait_vm' else emit(None, n)
            else: raise ValueError(x.text)
            continue
        if not on:
            out.append(x); continue
        if x.op == 's_waitcnt':
            for c, n in WAIT_RE.findall(x.text.split(';')[0]):
                n = int(n)
                if c == 'vmcnt': vm = vm[max(0, len(vm) - n):] if n else []
                else: lg = lg[max(0, len(lg) - n):] if n else []
            out.append(x); continue
        touched = vec(x.uses | x.defs)
        nv = nl = None
        if touched:
            idx = [i for i, (d, t) in enumerate(vm) if d & touched]
            if idx: nv = len(vm) - 1 - idx[-1]
            idx = [i for i, (d, t) in enumerate(lg) if d & touched]
            if idx: nl = len(lg) - 1 - idx[-1]
        if x.cls == 'vmem' and nv is not None and not any(d & vec(x.uses) for d, t in vm): nv = None
        if x.cls == 'ds' and nl is not None and not any(d & vec(x.uses) for d, t in lg): nl = None
        emit(nv, nl)
        out.append(x)
        if x.cls == 'vmem':
            vm.append((vec(x.defs), x.tag))
            if len(vm) > 63:
                pass
        elif x.cls == 'ds': lg.append((vec(x.defs), x.tag))
    return out

class Asm:
    def __init__(self): self.lines = []
    def __call__(self, s):
        for l in s.split('\n'):
            l = l.strip()
            if l: self.lines.append(l)
    def finish(self):
        ins = [Ins(l) for l in self.lines]
        ins = auto_waits(ins)
        ins = fix_hazards_fast(ins)
        txt = []
        for x in ins:
            t = re.sub(r'\s*;\s*@tag\s+\S+', '', x.text)
            txt.append(t if x.cls in ('label', 'dir') else '    ' + t)
        return '\n'.join(txt) + '\n'
```

```python
import sys
from asmlib import Asm
from common import *

class P:
    stamp = False
    LA = 5
    NWF = 6
    pkfma = True
    maxout = 7
    kvbar = 9
    poll_ahead = 3
    RD = 5
    prio_g1 = 1
    prio_g2 = 0
    prio_g2b = 2
    dummy = True
    spin = 0x20000
    pub_delay = 40
    wpre = [1, 2, 3, 'D']
    wfirst = 2
    planF = [0, 0, 0, 3, 3, 3, 3, 2, 2, 2, 2, 4, 4, 4]
    planA = [0, 0, 0, 3, 3, 3, 3, 3, 3, 4, 4, 4]
    late_num = 2
    late_den = 1

A2_BYTES = 64*144*1024
KV_OFF = A2_BYTES; KV_SLOT = 4352
FL_OFF = KV_OFF + 128*KV_SLOT
FL_H = FL_OFF; FL_O = FL_OFF + 16384; FL_KV = FL_OFF + 32768; EPOCH = FL_OFF + 36864
WS_USED = FL_OFF + 40960
TS_OFF = 128 << 20
RING = 0x10000; MISC = 0x24000; NRING = 5
MF = "v_mfma_f32_32x32x16_bf16"
CODE_MAX = 65536

S_X, S_WQKV, S_WO, S_W1, S_W2, S_OUT, S_DBG, S_WS = 4, 6, 8, 12, 14, 16, 18, 20
R_X, R_W, R_WS, R_W2, R_WO, R_OUT = 24, 28, 32, 36, 40, 44
S_WV = 3
S_I, S_IDX, S_TYPE, S_ROT, S_STRIDE, S_T, S_NONCE = 22, 23, 48, 49, 50, 51, 52
T0, T1, T2 = 53, 54, 55

def srd(a, d, base, size):
    a(f"""s_mov_b32 s{d}, s{base}
    s_mov_b32 s{d+1}, s{base+1}
    s_mov_b32 s{d+2}, {size}
    s_mov_b32 s{d+3}, 0x20000""")

NST = 12
def stamp(a, n):
    if P.stamp: a(f"s_memtime s[{78+2*n}:{79+2*n}]")
def stamp_init(a):
    if not P.stamp: return
    a("s_memrealtime s[76:77]")
    a("s_memtime s[78:79]")
    for n in range(1, NST): a(f"s_mov_b32 s{78+2*n}, 0")
def stamp_out(a, role):
    if not P.stamp: return
    a(f"""s_waitcnt vmcnt(0) lgkmcnt(0)
    s_memtime s[56:57]
    s_memrealtime s[58:59]
    s_lshl_b32 s{T0}, s2, 3
    s_add_u32 s{T0}, s{T0}, s{S_WV}
    s_add_u32 s{T0}, s{T0}, {4*role}
    s_lshl_b32 s{T0}, s{T0}, 6
    s_add_u32 s{T0}, s{T0}, {TS_OFF}
    v_mov_b32 v1, s{T0}
    s_waitcnt lgkmcnt(0)""")
    srcs = [f"s{78+2*n}" for n in range(NST)] + ["0", "s56", "s58", "s76"]
    for n, s in enumerate(srcs):
        a(f"v_mov_b32 v2, {s}")
        a(f"global_store_dword v1, v2, s[{S_WS}:{S_WS+1}] offset:{4*n}")

class Slow:
    def __init__(self): self.txt = []; self.n = 0
SLOW = Slow()

def nonce_load(a, v):
    a(f"v_mov_b32 v{v}, 0")
    a(f"global_load_dwordx2 {vr(v,2)}, v{v}, s[{S_DBG}:{S_DBG+1}] sc1")
def nonce_check(a, v):
    n = SLOW.n; SLOW.n += 1
    a(f"""v_readfirstlane_b32 s{T0}, v{v+1}
    v_readfirstlane_b32 s{S_NONCE}, v{v}
    s_cmp_eq_u32 s{T0}, 0
    s_cbranch_scc1 SLOW{n}
    BACK{n}:""")
    SLOW.txt.append(f"""SLOW{n}:
    s_mov_b32 s{T1}, 0
    SLOWL{n}:
    v_mov_b32 v{v}, 0
    global_load_dwordx2 {vr(v,2)}, v{v}, s[{S_DBG}:{S_DBG+1}] sc1
    s_waitcnt vmcnt(0)
    v_readfirstlane_b32 s{T0}, v{v+1}
    v_readfirstlane_b32 s{S_NONCE}, v{v}
    s_cmp_lg_u32 s{T0}, 0
    s_cbranch_scc1 BACK{n}
    s_add_u32 s{T1}, s{T1}, 1
    s_cmp_lt_u32 s{T1}, {P.spin}
    s_cbranch_scc1 SLOWL{n}
    s_branch BACK{n}""")
def poll_load(a, vd, va, sreg, off):
    a(f"buffer_load_dword v{vd}, v{va}, s[{R_WS}:{R_WS+3}], s{sreg} offen offset:{off} sc1")
def poll_check(a, vd, va, sreg, off):
    n = SLOW.n; SLOW.n += 1
    a(f"""v_cmp_ne_u32 vcc, s{S_NONCE}, v{vd}
    s_cbranch_vccnz SLOW{n}
    BACK{n}:""")
    SLOW.txt.append(f"""SLOW{n}:
    s_mov_b32 s{T1}, 0
    SLOWL{n}:
    buffer_load_dword v{vd}, v{va}, s[{R_WS}:{R_WS+3}], s{sreg} offen offset:{off} sc1
    s_waitcnt vmcnt(0)
    v_cmp_ne_u32 vcc, s{S_NONCE}, v{vd}
    s_cbranch_vccz BACK{n}
    s_add_u32 s{T1}, s{T1}, 1
    s_cmp_lt_u32 s{T1}, {P.spin}
    s_cbranch_scc1 SLOWL{n}
    s_branch BACK{n}""")

def cost(t):
    op = t.split()[0]
    if op.startswith('@') or op.endswith(':'): return 0
    if op.startswith(('v_exp', 'v_rcp', 'v_rsq')): return 8
    if op.startswith('v_mfma'): return 32
    if op.startswith(('buffer_', 'global_')): return 12
    if op.startswith('ds_'): return 8
    return 4

def spread(items, lo, hi):
    tot = sum(sum(cost(l.strip()) for l in it.split('\n') if l.strip()) for it in items)
    out = {}
    acc = 0
    n = hi - lo
    for it in items:
        c = sum(cost(l.strip()) for l in it.split('\n') if l.strip())
        g = lo + min(n - 1, int((acc + c/2) * n / max(tot, 1)))
        out.setdefault(g, []).append(it)
        acc += c
    return out
def merge(dst, src):
    for g, l in src.items(): dst.setdefault(g, []).extend(l)

def prologue(a):
    a(f"""s_cmp_ge_u32 s2, 256
    s_cbranch_scc1 K_END
    s_load_dwordx16 s[4:19], s[0:1], 0
    s_load_dwordx2 s[20:21], s[0:1], 64""")
    stamp_init(a)
    a(f"""s_getpc_b64 s[24:25]
    v_lshrrev_b32 v1, 6, v0
    s_lshr_b32 s{S_T}, s2, 3
    v_and_b32 v2, 1, v0
    v_lshl_add_u32 v2, v1, 1, v2
    v_lshlrev_b32 v2, 7, v2
    v_readfirstlane_b32 s{T2}, v1
    v_lshl_add_u32 v2, s{S_T}, 11, v2
    v_min_u32 v2, CODE_BYTES-256, v2
    global_load_dword v47, v2, s[24:25]
    v_and_b32 v0, 63, v0
    s_and_b32 s{T0}, s2, 3
    s_lshl_b32 s{T0}, s{T0}, 2
    s_and_b32 s{T1}, s{S_T}, 3
    s_add_u32 s{S_I}, s{T0}, s{T1}
    s_lshr_b32 s{S_IDX}, s{S_T}, 2
    s_lshl1_add_u32 s{S_ROT}, s{T1}, s{S_IDX}
    s_and_b32 s{S_ROT}, s{S_ROT}, 7
    s_lshr_b32 s{S_TYPE}, s{S_IDX}, 2
    s_and_b32 s{S_IDX}, s{S_IDX}, 3
    s_and_b32 s{T0}, s2, 4
    s_add_u32 s{S_IDX}, s{S_IDX}, s{T0}
    s_and_b32 s{S_WV}, s{T2}, 3
    v_lshrrev_b32 v1, 3, v0
    v_and_b32 v2, 7, v0
    v_lshrrev_b32 v4, 4, v0
    s_cmp_ge_u32 s{T2}, 4
    s_cbranch_scc1 G2_START
    @save top""")

X = 128; ACC = [64, 96]; WF = 40; PK = 24; TMP = 12
S_XROW, S_XLDS, S_XCH, S_A2B, S_COL0, S_FLA, S_C1, S_C2, S_ST = 56, 57, 58, 59, 60, 64, 65, 66, 67

def g1_start(a):
    XV = 64; XA = 68; ST = 72
    a(f"""v_xor_b32 v5, v2, v4
    v_lshlrev_b32 v5, 4, v5
    v_lshl_add_u32 v{XV}, v1, 10, v5
    v_xor_b32 v{XV+1}, 64, v{XV}
    v_add_u32 v{XV+1}, 7168, v{XV+1}
    v_add_u32 v{XV+2}, 14336, v{XV}
    v_add_u32 v{XV+3}, 14336, v{XV+1}
    s_lshl2_add_u32 s{T0}, s{S_I}, s{S_WV}
    s_lshl_b32 s{S_XROW}, s{T0}, 15
    s_lshl_b32 s{S_XLDS}, s{S_WV}, 14
    s_lshl_b32 s{S_XCH}, s{S_ROT}, 7
    s_waitcnt lgkmcnt(0)""")
    srd(a, R_X, S_X, 2048*1024)
    def xdma(c):
        a(f"""s_add_u32 m0, s{S_XLDS}, {(c&3)*4096}
        s_add_u32 s{T1}, s{S_XROW}, s{S_XCH}""")
        for q in range(4):
            a(f"buffer_load_dwordx4 v{XV+q}, s[{R_X}:{R_X+3}], s{T1} offen offset:{q*1024} lds ; @tag x{c}")
        if c < 7:
            a(f"""s_add_u32 s{S_XCH}, s{S_XCH}, 128
            s_and_b32 s{S_XCH}, s{S_XCH}, 1023""")
    for c in range(4): xdma(c)
    if P.prio_g1: a(f"s_setprio {P.prio_g1}")
    srd(a, R_WS, S_WS, WS_USED)
    a(f"""s_mul_i32 s{S_A2B}, s{T0}, {144*1024}
    s_lshr_b32 s{T1}, s{T0}, 1
    s_lshl_b32 s{T1}, s{T1}, 9
    s_and_b32 s{T0}, s{T0}, 1
    s_lshl3_add_u32 s{T0}, s{T0}, s{S_IDX}
    s_lshl2_add_u32 s{S_FLA}, s{T0}, s{T1}
    s_add_u32 s{S_FLA}, s{S_FLA}, {FL_H}""")
    a(f"""v_and_b32 v6, 31, v0
    v_lshrrev_b32 v7, 5, v0
    v_bfe_u32 v8, v0, 1, 3
    v_lshlrev_b32 v9, 7, v6
    v_add_u32 v9, s{S_XLDS}, v9""")
    for t in range(4):
        a(f"""v_add_u32 v10, {2*t}, v7
        v_xor_b32 v10, v10, v8
        v_lshl_add_u32 v{XA+t}, v10, 4, v9""")
    a(f"""v_bfe_u32 v8, v0, 2, 2
    v_lshl_add_u32 v9, v7, 3, v8
    v_and_b32 v10, 1, v4
    v_and_b32 v11, 3, v0
    v_lshlrev_b32 v10, 5, v10
    v_lshl_add_u32 v10, v11, 3, v10
    v_lshl_add_u32 v6, v9, 6, v10
    v_add_u32 v6, {RING}, v6
    v_lshrrev_b32 v8, 1, v8
    v_lshlrev_b32 v8, 6, v8
    v_xor_b32 v10, v10, v8
    v_lshl_add_u32 v2, v9, 7, v10
    v_add_u32 v2, {RING}, v2
    v_xor_b32 v3, 64, v2
    v_add_u32 v4, 0x10000, v2
    v_add_u32 v5, 0x10000, v3
    v_lshlrev_b32 v1, 4, v0
    s_mov_b32 s{S_C1}, 0x3f803f80""")
    for e in range(4): a(f"v_mov_b32 v{ST+e}, 0")
    stamp(a, 1)
    for c in range(8):
        a(f"@wait_vm x{c}")
        for t in range(4):
            a(f"ds_read_b128 {vr(X+16*c+4*t,4)}, v{XA+t} offset:{(c&3)*4096}")
        if c == 0: stamp(a, 2)
        if c < 4:
            a("@wait_lgkm xr")
            xdma(c + 4)
            if c == 3: a("s_barrier")
        for d in range(16):
            r = X+16*c+d
            a(f"v_dot2_f32_bf16 v{ST+(d&1)}, v{r}, s{S_C1}, v{ST+(d&1)}")
            a(f"v_dot2_f32_bf16 v{ST+2+(d&1)}, v{r}, v{r}, v{ST+2+(d&1)}")
    stamp(a, 3)
    a(f"""v_add_f32 v10, v{ST}, v{ST+1}
    v_add_f32 v8, v{ST+2}, v{ST+3}
    v_mov_b32 v11, v10
    v_mov_b32 v9, v8
    s_cmp_eq_u32 s{S_TYPE}, 0
    s_mov_b32 s{T0}, {hx(LOG2E)}
    v_permlane32_swap_b32 v10, v11
    v_permlane32_swap_b32 v8, v9
    s_cselect_b32 s{T0}, s{T0}, {hx(-LOG2E)}
    v_add_f32 v10, v10, v11
    v_add_f32 v8, v8, v9
    v_mul_f32 v10, {hx(1/512)}, v10
    v_mul_f32 v8, {hx(1/512)}, v8
    v_fma_f32 v8, -v10, v10, v8
    v_max_f32 v8, 0, v8
    v_add_f32 v8, {hx(1e-5)}, v8
    v_rsq_f32 v8, v8
    s_mov_b32 s{S_C2}, 0xffff0000
    v_mul_f32 v8, s{T0}, v8
    v_mul_f32 v10, -v10, v8
    v_mov_b32 v9, v8
    v_mov_b32 v11, v10
    s_cbranch_scc1 G1_A
    @save g1""")

def norm_ops(ks):
    out = []
    for d in range(4):
        r = X+4*ks+d; t = TMP + 2*d
        out.append(f"v_lshlrev_b32 v{t}, 16, v{r}")
        out.append(f"v_and_b32 v{t+1}, s{S_C2}, v{r}")
    for d in range(4):
        t = TMP + 2*d
        if P.pkfma: out.append(f"v_pk_fma_f32 {vr(t,2)}, {vr(t,2)}, v[8:9], v[10:11]")
        else:
            out.append(f"v_fma_f32 v{t}, v{t}, v8, v10")
            out.append(f"v_fma_f32 v{t+1}, v{t+1}, v8, v10")
    for d in range(4):
        t = TMP + 2*d
        out.append(f"v_cvt_pk_bf16_f32 v{X+4*ks+d}, v{t}, v{t+1}")
    return out

def g1_main(a, units, fill):
    slots = []
    tile0 = 0
    for (half, wa, buf) in units:
        if half:
            for ks in range(32):
                tile = tile0 + ks//16
                slots.append((tile, (ks % 16)*1024, 0, True, ACC[buf], ks, ks == 0, wa))
            tile0 += 2
        else:
            for ks in range(32):
                for b in range(2):
                    tile = tile0 + ks//8
                    slots.append((tile, (ks % 8)*2048, b, False, ACC[buf]+16*b, ks, ks == 0, wa))
            tile0 += 4
    def rd(n):
        tile, off, b, half, acc, ks, first, wa = slots[n]
        if n % 16 == 0:
            for it in fill.get(('bar', tile), []): a(it)
            a("s_barrier")
            for it in fill.get(('postbar', tile), []): a(it)
        sl = tile % NRING
        f = WF + 4*(n % P.NWF)
        if half:
            assert sl < 4
            ad = 6; o = sl*16384 + off; o2 = o + 256
        else:
            ad = (2 if sl < 4 else 4) + b; o = (sl % 4)*16384 + off; o2 = o + 512
        a(f"ds_read_b64_tr_b16 {vr(f,2)}, v{ad} offset:{o}")
        a(f"ds_read_b64_tr_b16 {vr(f+2,2)}, v{ad} offset:{o2}")
    for op in norm_ops(0): a(op)
    for n in range(P.LA): rd(n)
    for it in fill.get(-1, []): a(it)
    for n, (tile, off, b, half, acc, ks, first, wa) in enumerate(slots):
        f = WF + 4*(n % P.NWF)
        A, B = (vr(f,4), vr(X+4*ks,4)) if wa else (vr(X+4*ks,4), vr(f,4))
        a(f"{MF} {vr(acc,16)}, {A}, {B}, {'0' if first else vr(acc,16)}")
        if n + P.LA < len(slots): rd(n + P.LA)
        for it in fill.get(n, []): a(it)
        if n % 64 == 63 or n == len(slots) - 1: stamp(a, 4 + n//64)

def norm_fill():
    fill = {}
    for ks in range(1, 32):
        ops = norm_ops(ks); h = len(ops)//2
        fill.setdefault(2*ks-3, []).extend(ops[:h])
        fill.setdefault(2*ks-2, []).extend(ops[h:])
    return fill

def flag_store(sreg, off, v):
    return f"""v_mov_b32 v{v}, s{S_NONCE}
    s_mov_b64 exec, 1
    buffer_store_dword v{v}, off, s[{R_WS}:{R_WS+3}], s{sreg} offset:{off} sc1
    s_mov_b64 exec, -1"""

def silu_ops(acc, nb, un):
    T = 12; O = 24
    out = [f"s_add_u32 s{S_ST}, s{S_A2B}, s{S_COL0+un}"]
    npair = 8*nb
    pend = []
    for p in range(npair):
        r0, r1 = acc+2*p, acc+2*p+1
        t0, t1 = T + 2*(p & 1), T + 2*(p & 1) + 1
        out.append(f"v_exp_f32 v{t0}, v{r0}")
        out.extend(pend); pend = []
        out.append(f"v_exp_f32 v{t1}, v{r1}")
        out.append(f"v_add_f32 v{t0}, 1.0, v{t0}")
        out.append(f"v_rcp_f32 v{t0}, v{t0}")
        out.append(f"v_add_f32 v{t1}, 1.0, v{t1}")
        out.append(f"v_rcp_f32 v{t1}, v{t1}")
        out.append(f"v_mul_f32 v{r0}, v{t0}, v{r0}")
        fr = p//4; o = O + 4*(fr & 3)
        pend = [f"v_mul_f32 v{r1}, v{t1}, v{r1}", f"v_cvt_pk_bf16_f32 v{o+(p&3)}, v{r0}, v{r1}"]
        if p % 4 == 3:
            pend.append(f"buffer_store_dwordx4 {vr(o,4)}, v1, s[{R_WS}:{R_WS+3}], s{S_ST} offen offset:{fr*1024} sc1")
    out.extend(pend)
    return out

def g1_f(a):
    a(f"""s_mul_i32 s{T0}, s{S_IDX}, 14
    s_and_b32 s{T1}, s{S_IDX}, 1
    s_lshl1_add_u32 s{T2}, s{T1}, s{T0}
    s_lshl_b32 s{S_COL0}, s{T2}, 10
    s_add_u32 s{S_COL0+1}, s{S_COL0}, 4096
    s_add_u32 s{S_COL0+2}, s{S_COL0}, 8192
    s_cmp_eq_u32 s{T1}, 0
    s_cselect_b32 s{T1}, 12, 0
    s_add_u32 s{T0}, s{T0}, s{T1}
    s_lshl_b32 s{S_COL0+3}, s{T0}, 10""")
    fill = norm_fill()
    b = Asm(); nonce_load(b, 20); fill.setdefault(20, []).append("\n".join(b.lines))
    b = Asm(); nonce_check(b, 20); fill.setdefault(62, []).append("\n".join(b.lines))
    merge(fill, spread(silu_ops(ACC[0], 2, 0), 66, 128))
    merge(fill, spread(silu_ops(ACC[1], 2, 1), 130, 192))
    ops2 = silu_ops(ACC[0], 2, 2)
    h = len(ops2)*5//8
    merge(fill, spread(ops2[:h], 194, 224))
    fill.setdefault(min(127 + P.pub_delay, 223), []).append("@wait_vm st0\n" + flag_store(S_FLA, 0, 20))
    fill.setdefault(min(191 + P.pub_delay, 223), []).append("@wait_vm st1\n" + flag_store(S_FLA, 128, 20))
    g1_main(a, [(False, True, 0), (False, True, 1), (False, True, 0), (True, True, 1)], fill)
    a("s_barrier")
    for op in ops2[h:]: a(op)
    ops3 = silu_ops(ACC[1], 1, 3)
    for op in ops3: a(op)
    stamp(a, 8)
    a("@wait_vm st2"); a(flag_store(S_FLA, 256, 20))
    a("@wait_vm st3"); a(flag_store(S_FLA, 384, 21))
    stamp(a, 9)
    stamp_out(a, 0)
    a("s_endpgm")

def phi_ops(acc, zacc):
    T = 12
    out = []
    S_C0, S_LN2 = S_COL0, S_COL0+1
    pend = []
    for p in range(16):
        r0, r1 = acc+2*p, acc+2*p+1
        t0, t1 = T + 2*(p & 1), T + 2*(p & 1) + 1
        out.append(f"v_exp_f32 v{t0}, v{r0} clamp")
        out.append(f"v_max_f32 v{r0}, s{S_C0}, v{r0}")
        out.extend(pend); pend = []
        out.append(f"v_exp_f32 v{t1}, v{r1} clamp")
        out.append(f"v_max_f32 v{r1}, s{S_C0}, v{r1}")
        out.append(f"v_fmac_f32 v{t0}, s{S_LN2}, v{r0}")
        out.append(f"v_fmac_f32 v{t1}, s{S_LN2}, v{r1}")
        pend = [f"v_cvt_pk_bf16_f32 v{PK+p}, v{t0}, v{t1}"]
        if zacc is not None and p >= 1:
            q = p - 1; z = zacc + q//8
            pend.append(f"v_dot2_f32_bf16 v{z}, v{PK+q}, s{S_C1}, {'0' if q % 8 == 0 else f'v{z}'}")
    out.extend(pend)
    if zacc is not None:
        out.append(f"v_dot2_f32_bf16 v{zacc+1}, v{PK+15}, s{S_C1}, v{zacc+1}")
    return out

def g1_a(a):
    S_C0, S_LN2, S_KVG, S_KVF = S_COL0, S_COL0+1, S_COL0+2, S_COL0+3
    SM = 68
    a("G1_A:")
    a("@restore g1")
    a(f"""s_mov_b32 s{S_C0}, {hx(1e-6*LOG2E)}
    s_mov_b32 s{S_LN2}, {hx(LN2)}
    s_mul_i32 s{S_KVG}, s{S_IDX}, {16*KV_SLOT}
    s_add_u32 s{S_KVG}, s{S_KVG}, {KV_OFF}
    s_lshl2_add_u32 s{S_KVF}, s{S_IDX}, s{S_WV}
    s_lshl_b32 s{S_KVF}, s{S_KVF}, 7
    s_add_u32 s{S_KVF}, s{S_KVF}, {FL_KV}
    s_mov_b32 s{SM}, 0x0000ffff
    s_mov_b32 s{SM+1}, 0x0000ffff""")
    fill = norm_fill()
    b = Asm(); nonce_load(b, 20); fill.setdefault(20, []).append("\n".join(b.lines))
    b = Asm(); nonce_check(b, 20); fill.setdefault(62, []).append("\n".join(b.lines))
    Z = 22
    ops = phi_ops(ACC[0], Z)
    ops += [f"v_permlane32_swap_b32 v{Z}, v{Z+1}", f"v_add_f32 v{Z}, v{Z}, v{Z+1}"]
    ops += [f"v_bfe_u32 v8, v0, 4, 1", "v_lshlrev_b32 v8, 10, v8", "v_and_b32 v9, 15, v0", "v_lshl_add_u32 v8, v9, 4, v8",
            "v_lshl_add_u32 v8, v7, 8, v8", f"s_lshl_b32 s{T0}, s{S_WV}, 12\ns_add_u32 s{T0}, s{T0}, {MISC}\nv_add_u32 v8, s{T0}, v8",
            f"v_lshlrev_b32 v11, 2, v0", f"v_add_u32 v11, 14336, v11", f"v_add_u32 v9, s{S_XLDS}, v11",
            f"s_lshl_b32 s{T0}, s{S_WV}, 10\ns_add_u32 s{T0}, s{T0}, {MISC}\nv_add_u32 v10, s{T0}, v1",
            f"ds_write_b32 v9, v{Z}"]
    merge(fill, spread(ops, 66, 128))
    V = ACC[1]; D = ACC[1] + 16; T = 12
    ops = [f"v_cvt_pk_bf16_f32 v{V+e}, v{V+2*e}, v{V+2*e+1}" for e in range(16)]
    for b_ in range(2):
        ops.append(f"{MF} {vr(D,16)}, {vr(PK+8*b_,4)}, {vr(V+8*b_,4)}, 0\n{MF} {vr(D,16)}, {vr(PK+8*b_+4,4)}, {vr(V+8*b_+4,4)}, {vr(D,16)}")
        ops.append("@gap");
        for e in range(8): ops.append(f"v_cndmask_b32 v{T+e}, v{D+8+e}, v{D+e}, s[{SM}:{SM+1}]")
        for q in range(2): ops.append(f"ds_write_b128 v8, {vr(T+4*q,4)} offset:{b_*2048+q*512}")
    g = 130; last = 16*P.kvbar - P.LA - 1
    seq = [];
    for op in ops:
        seq.append(op)
    per = max(4, -(-len(seq) // max(1, last - g - 3)))
    cnt = 0
    for op in seq:
        if op == "@gap":
            g = min(g + 3, last); cnt = 0; continue
        fill.setdefault(g, []).append(op); cnt += 1
        if cnt >= per: g = min(g + 1, last); cnt = 0
    fill.setdefault(('bar', P.kvbar), []).append("@wait_lgkm kvw")
    g = 16*P.kvbar - P.LA
    ops = [f"ds_read_b128 {vr(V+4*p,4)}, v10 offset:{p*4096}" for p in range(4)]
    ops += [f"ds_read_b32 v{T+p}, v11 offset:{p*16384}" for p in range(4)]
    merge(fill, spread(ops, g, g + 3))
    ops = [f"s_mul_i32 s{T0}, s{S_I}, {KV_SLOT}\ns_add_u32 s{S_ST}, s{T0}, s{S_KVG}\ns_lshl_b32 s{T0}, s{S_WV}, 10\ns_add_u32 s{T2}, s{T0}, s{S_ST}"]
    for e in range(4): ops.append(f"v_add_f32 v{V+e}, v{V+e}, v{V+4+e}")
    for e in range(4): ops.append(f"v_add_f32 v{V+8+e}, v{V+8+e}, v{V+12+e}")
    for e in range(4): ops.append(f"v_add_f32 v{V+e}, v{V+e}, v{V+8+e}")
    ops.append(f"buffer_store_dwordx4 {vr(V,4)}, v1, s[{R_WS}:{R_WS+3}], s{T2} offen sc1")
    ops += [f"v_add_f32 v{T}, v{T}, v{T+1}", f"v_add_f32 v{T+2}, v{T+2}, v{T+3}", f"v_subrev_u32 v11, {14336-4096}, v11", f"v_add_f32 v{T}, v{T}, v{T+2}"]
    ops.append(f"buffer_store_dword v{T}, v11, s[{R_WS}:{R_WS+3}], s{S_ST} offen sc1")
    merge(fill, spread(ops, g + 5, g + 10))
    fill.setdefault(min(g + 10 + P.pub_delay*3//4, 191), []).append(
        f"s_lshl2_add_u32 s{T2}, s{S_I}, s{S_KVF}\n@wait_vm kvs\n" + flag_store(T2, 0, 20))
    g1_main(a, [(False, False, 0), (False, False, 1), (False, True, 0)], fill)
    a(f"""v_and_b32 v21, 15, v0
    v_lshlrev_b32 v21, 2, v21""")
    for i, op in enumerate(phi_ops(ACC[0], None)):
        a(op)
    poll_load(a, 20, 21, S_KVF, 0)
    for hd in range(4): a(f"ds_write_b128 v10, {vr(PK+4*hd,4)} offset:{hd*4096}")
    a(f"""s_lshl_b32 s{T0}, s{S_WV}, 12
    s_add_u32 s{T0}, s{T0}, {MISC}
    v_add_u32 v10, s{T0}, v1
    v_bfe_u32 v8, v0, 4, 1
    v_mul_u32_u24 v9, {KV_SLOT}, v8
    v_lshl_add_u32 v9, v21, 2, v9
    v_lshl_add_u32 v9, v7, 8, v9
    v_mul_u32_u24 v11, {KV_SLOT//4}, v21
    v_lshl_add_u32 v11, v8, 5, v11
    v_lshl_add_u32 v11, v7, 4, v11
    s_waitcnt lgkmcnt(0)
    s_barrier""")
    stamp(a, 7)
    for wv in range(4): a(f"ds_read_b128 {vr(PK+4*wv,4)}, v10 offset:{wv*1024}")
    poll_check(a, 20, 21, S_KVF, 0)
    stamp(a, 8)
    a(f"""s_lshl_b32 s{T0}, s{S_WV}, 6
    s_add_u32 s{T0}, s{T0}, s{S_KVG}
    s_add_u32 s{T0}, s{T0}, 4096
    buffer_load_dwordx4 v[12:15], v11, s[{R_WS}:{R_WS+3}], s{T0} offen sc1
    s_lshl_b32 s{T0}, s{S_WV}, 10
    s_add_u32 s{T0}, s{T0}, s{S_KVG}""")
    for m in range(8):
        for q in range(2):
            a(f"buffer_load_dwordx4 {vr(X+8*m+4*q,4)}, v9, s[{R_WS}:{R_WS+3}], s{T0} offen offset:{q*512} sc1")
        if m < 7: a(f"s_add_u32 s{T0}, s{T0}, {2*KV_SLOT}")
    a(f"""s_lshl2_add_u32 s{T0}, s{S_IDX}, s{S_WV}
    s_add_u32 s{T0}, s{T0}, 112
    s_mul_i32 s{T1}, s{S_I}, {4*144}
    s_add_u32 s{T0}, s{T0}, s{T1}
    s_lshl_b32 s{S_ST}, s{T0}, 10
    s_lshl3_add_u32 s{T1}, s{S_I}, s{S_WV}
    s_lshl_b32 s{T1}, s{T1}, 5
    s_add_u32 s{T1}, s{T1}, s{S_IDX}
    s_lshl_b32 s{T1}, s{T1}, 2
    s_add_u32 s{S_FLA}, s{T1}, {FL_O}
    v_and_b32 v22, 1, v0
    v_lshlrev_b32 v22, 5, v22
    v_and_b32 v23, 2, v0
    v_lshl_add_u32 v22, v23, 8, v22""")
    for sh in (1, 2, 4, 8):
        for e in range(4): a(f"v_add_f32 v{12+e}, v{12+e}, v{12+e} row_ror:{sh} row_mask:0xf bank_mask:0xf")
    for e in range(4): a(f"v_mov_b32 v{16+e}, v{12+e}")
    for e in range(4): a(f"v_permlane16_swap_b32 v{12+e}, v{16+e}")
    for e in range(4): a(f"v_cvt_pk_bf16_f32 v{12+e}, v{12+2*e}, v{13+2*e}")
    for m in range(1, 8):
        for e in range(8): a(f"v_add_f32 v{X+e}, v{X+e}, v{X+8*m+e}")
    for e in range(8): a(f"v_mov_b32 v{X+8+e}, v{X+e}")
    for e in range(8): a(f"v_permlane16_swap_b32 v{X+e}, v{X+8+e}")
    for e in range(8): a(f"v_add_f32 v{X+e}, v{X+e}, v{X+8+e}")
    for e in range(4): a(f"v_cvt_pk_bf16_f32 v{X+e}, v{X+2*e}, v{X+2*e+1}")
    for e in range(4): a(f"v_cndmask_b32 v{12+e}, v{12+e}, v{X+e}, s[{SM}:{SM+1}]")
    stamp(a, 9)
    for wv in range(4): a(f"{MF} {vr(64+16*wv,16)}, v[12:15], {vr(PK+4*wv,4)}, 0")
    for wv in range(4):
        d = 64+16*wv
        a(f"""v_add_f32 v16, {hx(1e-6)}, v{d+8}
        v_rcp_f32 v16, v16""")
        for e in range(8): a(f"v_mul_f32 v{d+e}, -v{d+e}, v16")
        for e in range(4): a(f"v_cvt_pk_bf16_f32 v{d+e}, v{d+2*e}, v{d+2*e+1}")
        a(f"buffer_store_dwordx4 {vr(d,4)}, v1, s[{R_WS}:{R_WS+3}], s{S_ST} offen sc1")
        if wv < 3: a(f"s_add_u32 s{S_ST}, s{S_ST}, {144*1024}")
    stamp(a, 10)
    a(f"""v_mov_b32 v20, s{S_NONCE}
    s_mov_b64 exec, 15
    s_waitcnt vmcnt(0)
    buffer_store_dword v20, v22, s[{R_WS}:{R_WS+3}], s{S_FLA} offen sc1
    s_mov_b64 exec, -1""")
    stamp(a, 11)
    stamp_out(a, 0)
    a("s_endpgm")

A2R = 8; B2R = 48; AC2 = 192; NREG = 18
WV_F = AC2; WV_H = AC2 + 4
S_TH, S_THH, S_TO = 56, 64, 68
S_RB = 4
S_CB = 10
S_LW = 14
S_LX = 15
S_FH = 16; S_FO = 17; S_RES = 26

def g2_start(a):
    a("G2_START:")
    a("@restore top")
    a(f"""s_cmp_eq_u32 s{S_TYPE}, 0
    s_movk_i32 s{T0}, 3072
    s_cselect_b32 s{S_STRIDE}, s{T0}, 3584
    v_and_b32 v4, 1, v4
    v_lshlrev_b32 v5, 2, v4
    v_xor_b32 v5, v5, v2
    v_lshlrev_b32 v5, 4, v5
    v_mad_u32_u24 v{WV_F}, v1, s{S_STRIDE}, v5
    s_lshl_b32 s{T0}, s{S_STRIDE}, 3
    s_sub_u32 s{T0}, s{T0}, 1024
    v_add_u32 v{WV_F+1}, s{T0}, v{WV_F}
    v_add_u32 v{WV_F+2}, s{T0}, v{WV_F+1}
    v_add_u32 v{WV_F+3}, s{T0}, v{WV_F+2}
    s_lshr_b32 s{T0}, s{S_WV}, 1
    s_add_u32 s{T0}, s{T0}, s{S_ROT}
    s_and_b32 s{T0}, s{T0}, 7
    s_and_b32 s{T1}, s{S_WV}, 1
    s_lshl1_add_u32 s56, s{T0}, s{T1}
    s_lshl_b32 s{T0}, s56, 5
    s_mul_i32 s57, s{T0}, s{S_STRIDE}
    s_lshl_b32 s58, s{S_IDX}, 7
    s_mul_i32 s59, s{S_IDX}, 448
    s_and_b32 s60, s{S_IDX}, 1
    s_lshl_b32 s{T0}, s60, 6
    s_add_u32 s61, s{T0}, s59
    s_add_u32 s62, s58, 1024
    s_cmp_eq_u32 s{S_TYPE}, 0
    s_cselect_b32 s62, s62, s61
    s_add_u32 s{T1}, s62, s57
    s_lshl_b32 s63, s{S_WV}, 12
    s_add_u32 m0, s63, {RING}
    s_waitcnt lgkmcnt(0)
    s_cmp_eq_u32 s{S_TYPE}, 0
    s_cselect_b32 s{R_W}, s{S_WQKV}, s{S_W1}
    s_cselect_b32 s{R_W+1}, s{S_WQKV+1}, s{S_W1+1}
    s_lshl_b32 s{R_W+2}, s{S_STRIDE}, 9
    s_mov_b32 s{R_W+3}, 0x20000""")
    for q in range(4):
        a(f"buffer_load_dwordx4 v{WV_F+q}, s[{R_W}:{R_W+3}], s{T1} offen offset:{q*1024} lds ; @tag w0")
    a("s_branch G2_CONT")

def g2_setup(a):
    a("G2_CONT:")
    if P.prio_g2: a(f"s_setprio {P.prio_g2}")
    srd(a, R_WS, S_WS, WS_USED)
    srd(a, R_W2, S_W2, 1792*1024)
    srd(a, R_WO, S_WO, 512*1024)
    srd(a, R_OUT, S_OUT, 2048*1024)
    a(f"""s_or_b32 s{T0}, s2, s{S_WV}
    s_cmp_eq_u32 s{T0}, 0
    s_cbranch_scc0 G2_NONONCE
    @off
    v_mov_b32 v8, {EPOCH}
    global_load_dword v9, v8, s[{S_WS}:{S_WS+1}] sc1
    s_mov_b32 s{T0}, 1664525
    s_waitcnt vmcnt(0)
    v_mul_lo_u32 v10, v9, s{T0}
    v_add_u32 v10, 1013904223, v10
    v_mov_b32 v11, 1
    v_mov_b32 v9, 0
    s_mov_b64 exec, 1
    global_store_dwordx2 v9, v[10:11], s[{S_DBG}:{S_DBG+1}] sc1
    global_store_dword v8, v10, s[{S_WS}:{S_WS+1}] sc1
    s_mov_b64 exec, -1
    @on
    G2_NONONCE:""")
    a(f"""s_cmp_eq_u32 s{S_WV}, 1
    s_cselect_b32 s70, s{S_W1}, s{S_WQKV}
    s_cselect_b32 s71, s{S_W1+1}, s{S_WQKV+1}
    s_cselect_b32 s{T0}, 56, 48
    s_cmp_eq_u32 s{S_WV}, 2
    s_cselect_b32 s70, s{S_W2}, s70
    s_cselect_b32 s71, s{S_W2+1}, s71
    s_cselect_b32 s{T0}, 56, s{T0}
    s_cmp_eq_u32 s{S_WV}, 3
    s_cselect_b32 s70, s{S_WO}, s70
    s_cselect_b32 s71, s{S_WO+1}, s71
    s_cselect_b32 s{T0}, 16, s{T0}
    s_mul_i32 s{T1}, s{T0}, s2
    s_sub_u32 s{T0}, s{T0}, 1
    v_min_u32 v8, s{T0}, v0
    v_add_lshl_u32 v{AC2+8}, v8, s{T1}, 7
    s_mov_b32 s{R_X}, s70
    s_mov_b32 s{R_X+1}, s71
    s_mov_b32 s72, s{S_X}
    s_mov_b32 s73, s{S_X+1}""")
    a(f"s_mov_b32 s{S_RB}, s57")
    for tau in range(1, 4):
        a(f"""s_add_u32 s{T0}, s56, {4*tau}
        s_and_b32 s{T0}, s{T0}, 15
        s_lshl_b32 s{T0}, s{T0}, 5
        s_mul_i32 s{S_RB+tau}, s{T0}, s{S_STRIDE}""")
    for tau in range(2):
        a(f"""s_add_u32 s{T0}, s{S_ROT}, s{S_WV}
        s_add_u32 s{T0}, s{T0}, {4*tau}
        s_and_b32 s{T0}, s{T0}, 7
        s_lshl_b32 s{T0}, s{T0}, 6
        s_mul_i32 s{S_RB+4+tau}, s{T0}, s{S_STRIDE}""")
    a(f"""s_mov_b32 s{S_CB}, s62
    s_add_u32 s{T0}, s58, 2048
    s_add_u32 s{T1}, s61, 128
    s_add_u32 s{T2}, s61, 256
    s_cmp_eq_u32 s{S_TYPE}, 0
    s_cselect_b32 s{S_CB+1}, s{T0}, s{T1}
    s_cselect_b32 s{S_CB+2}, s58, s{T2}
    s_cmp_eq_u32 s60, 0
    s_cselect_b32 s{T0}, 384, 0
    s_add_u32 s{S_CB+3}, s59, s{T0}
    s_add_u32 s{S_LW}, s63, {RING}
    s_lshl_b32 s{S_LX}, s{S_WV}, 14
    v_lshrrev_b32 v8, 2, v0
    v_and_b32 v9, 3, v0
    v_lshlrev_b32 v10, 4, v9
    v_mad_u32_u24 v{WV_H}, v8, s{S_STRIDE}, v10
    s_lshl_b32 s{T0}, s{S_STRIDE}, 4
    s_sub_u32 s{T0}, s{T0}, 1024
    v_add_u32 v{WV_H+1}, s{T0}, v{WV_H}
    v_add_u32 v{WV_H+2}, s{T0}, v{WV_H+1}
    v_add_u32 v{WV_H+3}, s{T0}, v{WV_H+2}""")
    a(f"""s_and_b32 s{T0}, s2, 3
    s_lshl_b32 s{T0}, s{T0}, 3
    s_and_b32 s{T1}, s2, 4
    s_add_u32 s{T0}, s{T0}, s{T1}
    s_and_b32 s{T1}, s{S_T}, 3
    s_add_u32 s{T0}, s{T0}, s{T1}
    s_lshr_b32 s{T2}, s{S_T}, 2
    s_lshl_b32 s{T2}, s{T2}, 7
    v_lshl_add_u32 v1, v1, 10, v5
    v_add_u32 v1, s{T2}, v1
    v_add_u32 v2, 7168, v1
    s_lshl_b32 s{S_FH}, s{T0}, 9
    s_lshl_b32 s{T1}, s{S_WV}, 7
    s_add_u32 s{S_FO}, s{S_FH}, s{T1}
    s_add_u32 s{S_FO}, s{S_FO}, {FL_O}
    s_add_u32 s{S_FH}, s{S_FH}, {FL_H}
    s_lshr_b32 s{T1}, s{S_WV}, 1
    s_lshl1_add_u32 s{T0}, s{T0}, s{T1}
    s_lshl_b32 s{S_RES}, s{T0}, 15
    s_add_u32 s{S_RES}, s{S_RES}, s{T2}
    s_and_b32 s{T2}, s{S_WV}, 1
    s_lshl_b32 s{T2}, s{T2}, 6
    s_add_u32 s{S_RES}, s{S_RES}, s{T2}
    s_mul_i32 s{T1}, s{T0}, {144*1024}
    v_lshlrev_b32 v6, 4, v0
    v_add_u32 v5, s{T1}, v6
    s_xor_b32 s{T0}, s{T0}, 1
    s_mul_i32 s{T1}, s{T0}, {144*1024}
    v_add_u32 v6, s{T1}, v6
    v_lshrrev_b32 v10, 5, v0
    v_and_b32 v8, 3, v8
    v_lshl_add_u32 v10, v10, 2, v8
    v_lshlrev_b32 v4, 5, v4
    v_lshl_add_u32 v4, v9, 3, v4
    v_lshrrev_b32 v8, 1, v8
    v_lshlrev_b32 v8, 6, v8
    v_xor_b32 v4, v4, v8
    v_lshl_add_u32 v3, v10, 7, v4
    v_xor_b32 v3, s{T2}, v3
    v_add_u32 v3, s{S_LX}, v3
    v_xor_b32 v4, 64, v3""")
    a(f"""s_mov_b32 s27, s72
    s_mov_b32 s{S_STRIDE}, s73""")
    for j in range(8):
        a(f"""s_add_u32 s{T0}, s{S_ROT}, {j}
        s_and_b32 s{T0}, s{T0}, 7
        s_lshl2_add_u32 s{T1}, s{T0}, s{S_WV}
        s_lshl_b32 s{S_TO+j}, s{T1}, 10
        s_and_b32 s{T1}, s{T0}, 1
        s_lshl1_add_u32 s{T1}, s{T1}, s{S_WV}
        s_mul_i32 s{T0}, s{T0}, 14
        s_add_u32 s{T0}, s{T0}, s{T1}
        s_lshl_b32 s{S_TH+j}, s{T0}, 10""")
    for j in range(4):
        a(f"""s_lshr_b32 s{T0}, s{S_WV}, 1
        s_add_u32 s{T0}, s{T0}, s{S_ROT}
        s_add_u32 s{T0}, s{T0}, {2*j}
        s_and_b32 s{T0}, s{T0}, 7
        s_bitcmp0_b32 s{T0}, 0
        s_cselect_b32 s{T1}, 12, 0
        s_mul_i32 s{T0}, s{T0}, 14
        s_add_u32 s{T0}, s{T0}, s{T1}
        s_and_b32 s{T1}, s{S_WV}, 1
        s_add_u32 s{T0}, s{T0}, s{T1}
        s_lshl_b32 s{S_THH+j}, s{T0}, 10""")
    a(f"""v_and_b32 v7, 15, v0
    v_lshlrev_b32 v{AC2+9}, 2, v7""")
    stamp(a, 1)
    a("s_barrier")
    stamp(a, 2)

def step_info(s):
    if s < 24: return (S_TH + s % 8, (s//8)*4096, (s//8)*65536, R_W2)
    if s < 28: return (S_THH + s - 24, 0, 0, R_W2)
    return (S_TO + s - 28, 112*1024, 0, R_WO)

def g2_body(a, typ):
    NT = 14 if typ == 'F' else 12
    nstage = 8 if typ == 'F' else 7
    def wtile(t):
        half = t >= 12
        un, tau = (3, t - 12) if half else (t//4, t % 4)
        a(f"""s_add_u32 m0, s{S_LW}, {(t % NRING)*16384}
        s_add_u32 s{T1}, s{S_CB+un}, s{S_RB+(4 if half else 0)+tau}""")
        for q in range(4):
            a(f"@throttle {P.maxout}")
            a(f"buffer_load_dwordx4 v{(WV_H if half else WV_F)+q}, s[{R_W}:{R_W+3}], s{T1} offen offset:{q*1024} lds ; @tag w{t}")
    last = [t % NRING for t in range(NT-5, NT)]
    def home(s):
        if s < NREG: return ('X', (s % nstage)*2048)
        if s < 26: return ('X', (s - 18)*2048)
        k = s - 26
        return ('R', last[k//2]*16384 + (k & 1)*2048)
    lastrd = {}
    def b2dma(s, thr=True):
        area, off = home(s)
        if (area, off) in lastrd: a(f"@wait_lgkm {lastrd[(area, off)]}")
        tb, _, c2, R = step_info(s)
        a(f"""s_add_u32 m0, s{S_LX if area == 'X' else S_LW}, {off}
        s_lshl4_add_u32 s{T1}, s{tb}, {c2}""")
        for q in range(2):
            if thr: a(f"@throttle {P.maxout}")
            a(f"buffer_load_dwordx4 v{1+q}, s[{R}:{R+3}], s{T1} offen offset:{q*1024} lds ; @tag b{s}")
    RA = B2R + 24
    def b2rd(s, dst):
        area, off = home(s)
        a(f"@wait_vm b{s}")
        for be in range(2):
            if area == 'X': ad, o = 3 + be, off
            else: ad, o = RA + be + (2 if off >= 65536 else 0), off % 65536
            a(f"ds_read_b64_tr_b16 {vr(dst+4*be,2)}, v{ad} offset:{o} ; @tag r{s}")
            a(f"ds_read_b64_tr_b16 {vr(dst+4*be+2,2)}, v{ad} offset:{o+1024} ; @tag r{s}")
        lastrd[(area, off)] = f"r{s}"
    pre = P.wpre
    for t in pre:
        if t == 'D':
            a(f"global_load_dword v{AC2+10}, v{AC2+8}, s[{R_X}:{R_X+1}]")
        else: wtile(t)
    a(f"""s_mov_b32 s{R_X}, s27
    s_mov_b32 s{R_X+1}, s{S_STRIDE}
    s_mov_b32 s{S_STRIDE}, s{S_RES}
    s_mov_b32 s{R_X+2}, {2048*1024}
    s_mov_b32 s{R_X+3}, 0x20000""")
    SRES = S_STRIDE
    a("@wait_vm w0")
    a("s_barrier")
    plan = P.planF if typ == 'F' else P.planA
    nearly = sum(plan)
    order = list(range(36))
    if typ == 'A':
        order.remove(25); order.insert(max(25, sum(plan[:P.kvbar+1])), 25)
    pos = 0; pend = []
    nextw = max(t for t in pre if t != 'D') + 1
    for t in range(NT):
        if t in (2, 6, 10): stamp(a, 3 + (t-2)//4)
        if t >= P.wfirst:
            while nextw < NT and nextw <= t + 3:
                wtile(nextw); nextw += 1
        assert nextw > min(t + 1, NT - 1)
        for s in pend: b2rd(s, B2R + 8*s)
        pend = []
        if t == 3: nonce_load(a, AC2+12)
        if t == 6: nonce_check(a, AC2+12)
        for k in range(plan[t]):
            s = order[pos]; pos += 1
            if s >= 26: assert t >= NT - 5 + (s-26)//2 + 2, (s, t)
            if typ == 'A' and s == 25: assert t >= P.kvbar + 1
            assert home(s) not in [home(x) for x in pend]
            b2dma(s)
            if s < NREG: pend.append(s)
        if t == NT - 1:
            a(f"v_mov_b32 v0, v{AC2+9}")
            poll_load(a, 7, 0, S_FH, 0)
        if t + 1 < NT: a(f"@wait_vm w{t+1}")
        a("s_barrier")
    assert pos >= NREG and not pend
    stamp(a, 6)
    if P.prio_g2b != P.prio_g2: a(f"s_setprio {P.prio_g2b}")
    polls = {0: (S_FH, 0), 8: (S_FH, 128), 16: (S_FH, 256), 24: (S_FH, 384), 28: (S_FO, 0)}
    def a2ld(s):
        if s in polls: poll_check(a, 7, 0, *polls[s])
        if s + P.poll_ahead in polls: poll_load(a, 7, 0, *polls[s + P.poll_ahead])
        tb, c1, _, _ = step_info(s)
        so = tb
        if c1:
            a(f"s_add_u32 s{T2}, s{tb}, {c1}"); so = T2
        for th in range(2):
            a(f"buffer_load_dwordx4 {vr(A2R+8*(s%P.RD)+4*th,4)}, v{5+th}, s[{R_WS}:{R_WS+3}], s{so} offen sc1")
    for s in range(P.RD): a2ld(s)
    XR = B2R + 32; XA = B2R + 28
    rest = sorted(order[pos:])
    late = {}
    for k, s in enumerate(rest):
        at = 1 + (k*P.late_num)//P.late_den
        assert at + 6 <= s
        late.setdefault(at, []).append(s)
    for s in range(36):
        if s in (8, 16, 28): stamp(a, {8: 7, 16: 8, 28: 9}[s])
        bf = B2R + 8*s if s < NREG else B2R + 8*(s & 1)
        for th in range(2):
            for be in range(2):
                acc = AC2 + 16*(2*th+be)
                a(f"{MF} {vr(acc,16)}, {vr(bf+4*be,4)}, {vr(A2R+8*(s%P.RD)+4*th,4)}, {'0' if s == 0 else vr(acc,16)}")
                if th == 0 and be == 0 and NREG <= s + 1 < 36: b2rd(s + 1, B2R + 8*((s+1) & 1))
        if s + P.RD < 36: a2ld(s + P.RD)
        for x in late.get(s, []): b2dma(x, thr=False)
        if s == 9:
            a(f"""s_sub_u32 s{T1}, s{S_LW}, s{S_LX}
            v_add_u32 v{RA}, s{T1}, v3
            v_add_u32 v{RA+1}, s{T1}, v4
            v_add_u32 v{RA+2}, 0x10000, v{RA}
            v_add_u32 v{RA+3}, 0x10000, v{RA+1}""")
        if s == 10:
            a(f"""v_mbcnt_lo_u32_b32 v{XA+1}, -1, 0
            v_mbcnt_hi_u32_b32 v{XA+1}, -1, v{XA+1}
            v_and_b32 v{XA}, 31, v{XA+1}
            v_lshlrev_b32 v{XA}, 10, v{XA}
            v_lshrrev_b32 v{XA+2}, 5, v{XA+1}
            v_lshl_add_u32 v{XA}, v{XA+2}, 4, v{XA}
            v_lshlrev_b32 v{XA+1}, 4, v{XA+1}""")
        if s == 34:
            a(f"""buffer_load_dwordx4 {vr(XR,4)}, v{XA}, s[{R_X}:{R_X+3}], s{SRES} offen
            buffer_load_dwordx4 {vr(XR+4,4)}, v{XA}, s[{R_X}:{R_X+3}], s{SRES} offen offset:32
            v_add_u32 v{XA+2}, s{S_LX}, v{XA+1}""")
    stamp(a, 10)
    for tau in range(1, 4):
        for q in range(4): a(f"ds_write_b128 v{XA+2}, {vr(AC2+16*tau+4*q,4)} offset:{(tau-1)*4096+q*1024}")
    for tau in range(1, 4):
        a(f"""s_xor_b32 s{T0}, s{S_WV}, {tau}
        s_lshl_b32 s{T0}, s{T0}, 14
        v_add_u32 v{8+tau}, s{T0}, v{XA+1}""")
    a(f"""s_mov_b32 s{T0}, {hx(-LN2)}
    s_mov_b32 s{T1}, 0xffff0000""")
    for p in range(2):
        a(f"v_permlane32_swap_b32 v{XR+4*p}, v{XR+4*p+2}")
        a(f"v_permlane32_swap_b32 v{XR+4*p+1}, v{XR+4*p+3}")
    U = 16
    for d in range(8):
        a(f"""v_lshlrev_b32 v{U+2*d}, 16, v{XR+d}
        v_and_b32 v{U+2*d+1}, s{T1}, v{XR+d}""")
    for e in range(16): a(f"v_fmac_f32 v{U+e}, s{T0}, v{AC2+e}")
    a("""s_waitcnt lgkmcnt(0)
    s_barrier""")
    for q in range(4):
        for tau in range(1, 4): a(f"ds_read_b128 {vr(AC2+16*tau+4*q,4)}, v{8+tau} offset:{(tau-1)*4096+q*1024}")
    for p in range(2):
        for q in (2*p, 2*p+1):
            for tau in range(1, 4):
                for e in range(4): a(f"v_fmac_f32 v{U+4*q+e}, s{T0}, v{AC2+16*tau+4*q+e}")
        for d in range(4): a(f"v_cvt_pk_bf16_f32 v{XR+4*p+d}, v{U+8*p+2*d}, v{U+8*p+2*d+1}")
        a(f"v_permlane32_swap_b32 v{XR+4*p}, v{XR+4*p+2}")
        a(f"v_permlane32_swap_b32 v{XR+4*p+1}, v{XR+4*p+3}")
        a(f"buffer_store_dwordx4 {vr(XR+4*p,4)}, v{XA}, s[{R_OUT}:{R_OUT+3}], s{SRES} offen offset:{32*p}")
    stamp(a, 11)
    stamp_out(a, 1)
    a("s_endpgm")

def kernel():
    SLOW.txt = []; SLOW.n = 0
    a = Asm()
    prologue(a)
    a("s_branch G1_START")
    g2_start(a)
    a("@save g2s")
    a("G1_START:")
    a("@restore top")
    g1_start(a)
    g1_f(a)
    g1_a(a)
    a("@restore g2s")
    g2_setup(a)
    a(f"""s_cmp_eq_u32 s{S_TYPE}, 0
    s_cbranch_scc1 G2_A
    @save g2""")
    g2_body(a, 'F')
    a("G2_A:")
    a("@restore g2")
    g2_body(a, 'A')
    a("@off")
    for t in SLOW.txt: a(t)
    a("K_END:")
    a("s_endpgm")
    return a.finish()

def build():
    kn = NAME + "_kernel"
    s = HEADER
    s += "; @launch grid=(256,1,1) block=(512,1,1) lds=163840\n"
    s += '.amdgcn_target "amdgcn-amd-amdhsa--gfx950"\n.text\n'
    s += entry(kn) + kernel()
    s += f"K_LAST:\n.set CODE_BYTES, K_LAST-{kn}\n"
    s += '.section .rodata,"a"\n.p2align 6\n' + kd(kn)
    return s
if __name__ == "__main__":
    for kv in sys.argv[2:]:
        k, v = kv.split("=")
        setattr(P, k, eval(v))
    open(sys.argv[1], "w").write(build())
```

```python
import re

REG_RE = re.compile(r'^-?\|?(?:abs\()?([vas])(?:(\d+)|\[(\d+):(\d+)\])\)?\|?$')

def regs_of(tok):
    tok = tok.strip()
    if tok in ('vcc',): return {('s', 'vcc_lo'), ('s', 'vcc_hi')}
    if tok in ('vcc_lo', 'vcc_hi'): return {('s', tok)}
    if tok == 'exec': return {('s', 'exec_lo'), ('s', 'exec_hi')}
    if tok in ('exec_lo', 'exec_hi'): return {('s', tok)}
    if tok == 'm0': return {('s', 'm0')}
    m = REG_RE.match(tok)
    if not m: return set()
    f = m.group(1)
    if m.group(2) is not None: return {(f, int(m.group(2)))}
    return {(f, i) for i in range(int(m.group(3)), int(m.group(4)) + 1)}

TRANS = ('v_exp_', 'v_log_', 'v_rcp_', 'v_rsq_', 'v_sqrt_', 'v_sin_', 'v_cos_')

class Ins:
    __slots__ = ('text', 'op', 'ops', 'mods', 'cls', 'defs', 'uses', 'srcA', 'srcB', 'srcC', 'passes',
                 'trans', 'dpp', 'tag', 'store_data', 'wide', 'lds_dma', 'label', 'target', 'dot', 'pseudo')
    def __init__(self, text):
        self.text = text
        self.tag = None; self.pseudo = None; self.label = None; self.target = None
        self.defs = set(); self.uses = set(); self.srcA = set(); self.srcB = set(); self.srcC = set()
        self.passes = 0; self.trans = False; self.dpp = False; self.store_data = set(); self.wide = False
        self.lds_dma = False; self.dot = False; self.op = ''; self.ops = []; self.mods = []
        t = text.split(';')[0].strip()
        m = re.search(r';\s*@tag\s+(\S+)', text)
        if m: self.tag = m.group(1)
        if text.strip().startswith('@'):
            self.cls = 'pseudo'; self.pseudo = text.strip()[1:].split(); return
        if not t: self.cls = 'none'; return
        if t.endswith(':'): self.cls = 'label'; self.label = t[:-1]; return
        if t.startswith('.'): self.cls = 'dir'; return
        parts = t.split(None, 1)
        self.op = op = parts[0]
        rest = parts[1] if len(parts) > 1 else ''
        ops = [o.strip() for o in rest.split(',')] if rest else []
        joined = []
        depth = 0
        for o in ops:
            if depth > 0: joined[-1] += ',' + o
            else: joined.append(o)
            depth += o.count('[') - o.count(']')
        ops = joined
        if ops:
            last = ops[-1].split()
            ops[-1] = last[0] if last else ''
            self.mods = last[1:]
        self.ops = ops
        R = regs_of
        if op.startswith('v_mfma'):
            self.cls = 'mfma'
            self.defs = R(ops[0]); self.srcA = R(ops[1]); self.srcB = R(ops[2]); self.srcC = R(ops[3])
            self.uses = self.srcA | self.srcB | self.srcC
            self.passes = 8 if '32x32x16' in op else 4 if '16x16x32' in op else None
            assert self.passes, op
        elif op.startswith('v_'):
            self.cls = 'valu'
            self.trans = op.startswith(TRANS)
            self.dot = op.startswith('v_dot')
            self.dpp = any(x.startswith(('row_', 'quad_perm', 'wave_')) for x in self.mods) or op.endswith('_dpp')
            if op == 'v_nop': return
            if op.startswith('v_permlane') and 'swap' in op:
                self.defs = R(ops[0]) | R(ops[1]); self.uses = set(self.defs)
            elif op.startswith(('v_add_co', 'v_sub_co', 'v_addc_co', 'v_subb_co')):
                self.defs = R(ops[0]) | R(ops[1])
                for o in ops[2:]: self.uses |= R(o)
            else:
                self.defs = R(ops[0])
                for o in ops[1:]: self.uses |= R(o)
                if op.startswith(('v_fmac', 'v_dot2c', 'v_mac', 'v_writelane')) or self.dpp:
                    self.uses |= self.defs
        elif op.startswith('ds_'):
            self.cls = 'ds'
            if op.startswith(('ds_read', 'ds_bpermute', 'ds_permute', 'ds_swizzle')) or '_rtn' in op:
                self.defs = R(ops[0])
                for o in ops[1:]: self.uses |= R(o)
            else:
                for o in ops: self.uses |= R(o)
        elif op.startswith(('buffer_', 'global_')):
            self.cls = 'vmem'
            if op in ('buffer_wbl2', 'buffer_inv'): return
            if op.startswith('buffer_load'):
                if 'lds' in self.mods:
                    self.lds_dma = True
                    for o in ops: self.uses |= R(o)
                    self.uses |= R('m0')
                else:
                    self.defs = R(ops[0])
                    for o in ops[1:]: self.uses |= R(o)
            elif op.startswith('buffer_store'):
                for o in ops: self.uses |= R(o)
                self.store_data = R(ops[0]); self.wide = op.endswith(('x3', 'x4'))
            elif op.startswith('buffer_atomic'):
                for o in ops: self.uses |= R(o)
                if 'sc0' in self.mods: self.defs = R(ops[0])
            elif op.startswith('global_load'):
                self.defs = R(ops[0])
                for o in ops[1:]: self.uses |= R(o)
            elif op.startswith('global_store'):
                for o in ops: self.uses |= R(o)
                self.store_data = R(ops[1]); self.wide = op.endswith(('x3', 'x4'))
            elif op.startswith('global_atomic'):
                if 'sc0' in self.mods:
                    self.defs = R(ops[0])
                    for o in ops[1:]: self.uses |= R(o)
                else:
                    for o in ops: self.uses |= R(o)
            else: raise ValueError(op)
        elif op.startswith('s_'):
            self.cls = 'salu'
            if op.startswith('s_atomic'):
                self.cls = 'smem'
                for o in ops: self.uses |= R(o)
            elif op.startswith(('s_load', 's_memtime', 's_memrealtime', 's_buffer_load')):
                self.cls = 'smem'
                self.defs = R(ops[0])
                for o in ops[1:]: self.uses |= R(o)
            elif op.startswith(('s_branch', 's_cbranch')):
                self.cls = 'branch'; self.target = ops[0]
                if 'vcc' in op: self.uses = R('vcc')
                if 'exec' in op: self.uses = R('exec')
            elif op.startswith(('s_waitcnt', 's_nop', 's_barrier', 's_endpgm', 's_setprio', 's_sleep')):
                pass
            elif op.startswith(('s_cmp', 's_bitcmp')):
                for o in ops: self.uses |= R(o)
            else:
                self.defs = R(ops[0])
                for o in ops[1:]: self.uses |= R(o)
                if 'saveexec' in op: self.defs |= R('exec'); self.uses |= R('exec')
                if op.startswith(('s_addk', 's_mulk')): self.uses |= self.defs
        else:
            raise ValueError('cannot parse: ' + text)

    def states(self):
        if self.cls in ('none', 'label', 'dir', 'pseudo'): return 0
        if self.op == 's_nop': return int(self.ops[0], 0) + 1
        return 1

def vec(s): return {r for r in s if r[0] in 'va'}
def sca(s): return {r for r in s if r[0] == 's'}

def need(p, c):
    n = 0
    if p.cls == 'valu':
        vd = vec(p.defs); sd = sca(p.defs)
        if c.cls == 'mfma' and vd & c.uses: n = max(n, 2)
        if c.cls == 'valu':
            if p.trans and vd & c.uses: n = max(n, 1)
            if c.op.startswith(('v_readfirstlane', 'v_readlane')) and vd & c.uses: n = max(n, 1)
            if c.op.startswith('v_permlane') and vd & c.uses: n = max(n, 2)
            if c.dpp and vd & c.uses: n = max(n, 2)
            if sd & c.uses:
                n = max(n, 4 if c.op.startswith(('v_readlane', 'v_writelane', 'v_div_fmas')) else 2)
            if c.op.startswith('v_cndmask') and len(c.ops) == 3 and sd & regs_of('vcc'): n = max(n, 2)
        if c.cls == 'vmem' and sd & c.uses: n = max(n, 5)
        if p.dot:
            if c.cls in ('valu', 'mfma', 'vmem', 'ds'):
                if c.op == p.op:
                    ab = set()
                    for o in c.ops[1:3]: ab |= regs_of(o)
                    if vd & ab: n = max(n, 3)
                elif vd & (c.uses | c.defs): n = max(n, 3)
        if p.trans and c.cls in ('vmem', 'ds') and vd & c.uses: n = max(n, 1)
    if p.cls == 'mfma':
        P = p.passes
        if c.cls == 'mfma':
            if p.defs & (c.srcA | c.srcB): n = max(n, P + 4)
            if p.defs & c.srcC and not (p.defs == c.srcC and c.passes == P): n = max(n, P + 2)
            if p.defs & c.defs and not (p.defs == c.defs and c.passes == P): n = max(n, P + 2)
        elif c.cls in ('valu', 'vmem', 'ds'):
            if p.defs & (c.uses | c.defs): n = max(n, P + 4)
            if p.srcC & c.defs: n = max(n, P - 1)
    if p.cls == 'vmem' and p.wide and p.store_data & c.defs:
        n = max(n, 2)
    if p.cls == 'salu' and ('s', 'm0') in p.defs and c.lds_dma: n = max(n, 1)
    return n

LOOK = 20

def fix_hazards_fast(ins):
    for _ in range(50):
        labels = {x.label: i for i, x in enumerate(ins) if x.cls == 'label'}
        srcs = {}
        for i, x in enumerate(ins):
            if x.cls == 'branch': srcs.setdefault(labels[x.target], []).append(i)
        extra = {}
        for i, c in enumerate(ins):
            if c.cls not in ('valu', 'mfma', 'vmem', 'ds'): continue
            worst = 0
            stack = [(i - 1, 0)]
            seen = set()
            while stack:
                j, d = stack.pop()
                while j >= 0 and d < LOOK:
                    if (j, d) in seen: break
                    seen.add((j, d))
                    p = ins[j]
                    if p.cls == 'label':
                        for s in srcs.get(j, []): stack.append((s, d))
                    else:
                        n = need(p, c)
                        if n - d > worst: worst = n - d
                        d += p.states()
                    d += extra.get(j, 0)
                    j -= 1
            if worst > 0: extra[i] = worst
        if not extra: return ins
        out = []
        for i, c in enumerate(ins):
            if i in extra: out.append(Ins(f's_nop {extra[i] - 1}'))
            out.append(c)
        ins = out
    raise RuntimeError('hazard fixing did not converge')

WAIT_RE = re.compile(r'(vmcnt|lgkmcnt)\((\d+)\)')

def auto_waits(ins):
    out = []
    vm = []
    lg = []
    on = True
    saved = {}
    def emit(nv, nl):
        nonlocal vm, lg
        parts = []
        if nv is not None:
            nv = min(nv, 62); parts.append(f'vmcnt({nv})'); vm = vm[len(vm) - nv:] if nv else []
        if nl is not None:
            nl = min(nl, 14); parts.append(f'lgkmcnt({nl})'); lg = lg[len(lg) - nl:] if nl else []
        if parts: out.append(Ins('s_waitcnt ' + ' '.join(parts)))
    for x in ins:
        if x.cls == 'pseudo':
            p = x.pseudo
            if p[0] == 'reset': vm = []; lg = []
            elif p[0] == 'off': on = False
            elif p[0] == 'on': on = True
            elif p[0] == 'throttle':
                n = int(p[1])
                if len(vm) > n: emit(n, None)
            elif p[0] == 'need':
                t = regs_of(p[1]); nv = nl = None
                idx = [i for i, (d, _) in enumerate(vm) if d & t]
                if idx: nv = len(vm) - 1 - idx[-1]
                idx = [i for i, (d, _) in enumerate(lg) if d & t]
                if idx: nl = len(lg) - 1 - idx[-1]
                emit(nv, nl)
            elif p[0] == 'save': saved[p[1]] = (list(vm), list(lg))
            elif p[0] == 'restore': vm, lg = list(saved[p[1]][0]), list(saved[p[1]][1])
            elif p[0] in ('wait_vm', 'wait_lgkm'):
                q = vm if p[0] == 'wait_vm' else lg
                idx = [i for i, (d, t) in enumerate(q) if t in p[1:]]
                if idx:
                    n = len(q) - 1 - idx[-1]
                    emit(n, None) if p[0] == 'wait_vm' else emit(None, n)
            else: raise ValueError(x.text)
            continue
        if not on:
            out.append(x); continue
        if x.op == 's_waitcnt':
            for c, n in WAIT_RE.findall(x.text.split(';')[0]):
                n = int(n)
                if c == 'vmcnt': vm = vm[max(0, len(vm) - n):] if n else []
                else: lg = lg[max(0, len(lg) - n):] if n else []
            out.append(x); continue
        touched = vec(x.uses | x.defs)
        nv = nl = None
        if touched:
            idx = [i for i, (d, t) in enumerate(vm) if d & touched]
            if idx: nv = len(vm) - 1 - idx[-1]
            idx = [i for i, (d, t) in enumerate(lg) if d & touched]
            if idx: nl = len(lg) - 1 - idx[-1]
        if x.cls == 'vmem' and nv is not None and not any(d & vec(x.uses) for d, t in vm): nv = None
        if x.cls == 'ds' and nl is not None and not any(d & vec(x.uses) for d, t in lg): nl = None
        emit(nv, nl)
        out.append(x)
        if x.cls == 'vmem':
            vm.append((vec(x.defs), x.tag))
            if len(vm) > 63:
                pass
        elif x.cls == 'ds': lg.append((vec(x.defs), x.tag))
    return out

class Asm:
    def __init__(self): self.lines = []
    def __call__(self, s):
        for l in s.split('\n'):
            l = l.strip()
            if l: self.lines.append(l)
    def finish(self):
        ins = [Ins(l) for l in self.lines]
        ins = auto_waits(ins)
        ins = fix_hazards_fast(ins)
        txt = []
        for x in ins:
            t = re.sub(r'\s*;\s*@tag\s+\S+', '', x.text)
            txt.append(t if x.cls in ('label', 'dir') else '    ' + t)
        return '\n'.join(txt) + '\n'
```

```python
import sys
from asmlib import Asm
from common import *

class P:
    stamp = False
    LA = 5; NWF = 6
    maxout = 7
    RD = 5
    pa = 5
    prio_g1 = 1; prio_tail = 3; prio_g2 = 0; prio_g2b = 0
    spin = 1 << 22
    pub_delay = 24; kv_delay = 26
    kvpoll = (0, 6)
    e2frac = 5
    xla = 3
    cluster = True
    lastF = 12; lastA = 10
    mapn = 0
    border = None
    progF = 'WD|W . WW . W . WBB . WBB . WBB . WBB . WBB . WBB . WBB . WBB . WBB . BBBB . BBPBBBB'
    progA = 'WD|W . WW . W . WBB . WBB . WBB . WBB . WBB . WBB . WBB . BBBB . BBBB BBPBBBB'
    thr2 = 9; thr2_until = 0
    sleep = 1
    nopoll = False; nob2 = False; hstore = 'sc1'
    st1 = ['g1_karg', 'g1_x0', 'g1_xdone', 'g1_ln', 'g1_u0', 'g1_u1', 'g1_u2', 'g1_7', 'g1_8', 'g1_9', 'g1_11']
    st2 = ['g2_e0', 'g2_t10', 'g2_p1end', 'g2_c0', 'g2_s1', 'g2_c8', 'g2_c16', 'g2_c24', 'g2_c28', 'g2_mend', 'g2_end']

TBS = 144*1024
KV_OFF = 64*TBS; KV_SLOT = 4352
FL_H = KV_OFF + 128*KV_SLOT
FL_KV = FL_H + 16384
EPOCH = FL_KV + 4096
WS_USED = EPOCH + 128
TS_OFF = 128 << 20
RING = 0x10000; NRING = 5; MISC = 0x24000
AFR = RING + 2*16384; AFL = AFR + 4096
MF = "v_mfma_f32_32x32x16_bf16"
S_X, S_WQKV, S_WO, S_W1, S_W2, S_OUT, S_DBG, S_WS = 4, 6, 8, 12, 14, 16, 18, 20
R_X, R_W, R_WS, R_W2, R_WO, R_OUT = 24, 28, 32, 36, 40, 44
S_BUD, S_WV, S_I, S_IDX, S_TYPE, S_ROT, S_STRIDE, S_T, S_NONCE = 0, 3, 22, 23, 48, 49, 50, 51, 52
T0, T1, T2 = 54, 55, 1

def srd(a, d, base, size):
    a(f"""s_mov_b64 s[{d}:{d+1}], s[{base}:{base+1}]
    s_mov_b32 s{d+2}, {size}
    s_mov_b32 s{d+3}, 0x20000""")

NST = 12
def stamp(a, name):
    if not P.stamp: return
    for lst in (P.st1, P.st2):
        if name in lst:
            n = lst.index(name) + 1
            a(f"s_memtime s[{78+2*n}:{79+2*n}]")
def stamp_init(a):
    if not P.stamp: return
    a("s_memrealtime s[76:77]")
    a("s_memtime s[78:79]")
    for n in range(1, NST): a(f"s_mov_b32 s{78+2*n}, 0")
def stamp_out(a, role):
    if not P.stamp: return
    a(f"""s_waitcnt vmcnt(0) lgkmcnt(0)
    s_memtime s[56:57]
    s_memrealtime s[58:59]
    s_lshl_b32 s{T0}, s2, 3
    s_add_u32 s{T0}, s{T0}, s{S_WV}
    s_add_u32 s{T0}, s{T0}, {4*role}
    s_lshl_b32 s{T0}, s{T0}, 6
    s_add_u32 s{T0}, s{T0}, {TS_OFF}
    v_mov_b32 v1, s{T0}
    s_waitcnt lgkmcnt(0)""")
    srcs = [f"s{78+2*n}" for n in range(NST)] + ["0", "s56", "s58", "s76"]
    for n, s in enumerate(srcs):
        a(f"v_mov_b32 v2, {s}")
        a(f"global_store_dword v1, v2, s[{S_WS}:{S_WS+1}] offset:{4*n}")

class U: n = 0
def uid():
    U.n += 1; return U.n

def budget(n):
    return f"""s_sub_u32 s{S_BUD}, s{S_BUD}, {n}
    s_cmp_lt_i32 s{S_BUD}, 0"""

def nonce_load():
    return f"s_load_dwordx2 s[{S_NONCE}:{S_NONCE+1}], s[{S_DBG}:{S_DBG+1}], 0"
def nonce_check():
    n = uid()
    return f"""RE{n}:
    s_waitcnt lgkmcnt(0)
    s_cmp_lg_u32 s{S_NONCE+1}, 0
    s_cbranch_scc1 OK{n}
    s_sleep 4
    s_load_dwordx2 s[{S_NONCE}:{S_NONCE+1}], s[{S_DBG}:{S_DBG+1}], 0 glc
    {budget(16)}
    s_cbranch_scc0 RE{n}
    s_waitcnt lgkmcnt(0)
    OK{n}:
    s_mov_b32 s{S_NONCE+1}, s{S_NONCE}"""
def flag_set(base, off):
    return f"s_atomic_swap s{S_NONCE}, s[{base}:{base+1}], {off}"
def poll_load(dst, nw, base, off):
    if P.nopoll: return ""
    return f"s_load_dwordx{nw} s[{dst}:{dst+nw-1}], s[{base}:{base+1}], {off} glc"
def poll_check(dst, nw, base, off):
    if P.nopoll: return ""
    n = uid()
    NP = f"s[{S_NONCE}:{S_NONCE+1}]"
    t = [f"s_xor_b64 s[{dst+2*k}:{dst+2*k+1}], s[{dst+2*k}:{dst+2*k+1}], {NP}" for k in range(nw//2)]
    t += [f"s_or_b64 s[{dst}:{dst+1}], s[{dst}:{dst+1}], s[{dst+2*k}:{dst+2*k+1}]" for k in range(1, nw//2)]
    t = "\n".join(t)
    return f"""RE{n}:
    s_waitcnt lgkmcnt(0)
    {t}
    s_cbranch_scc0 OK{n}
    {f's_sleep {P.sleep}' if P.sleep else ''}
    {poll_load(dst, nw, base, off)}
    {budget(16)}
    s_cbranch_scc0 RE{n}
    s_waitcnt lgkmcnt(0)
    OK{n}:"""
def lds_wait(vd, vaddr, val):
    n = uid()
    return f"""RE{n}:
    ds_read_b32 v{vd}, v{vaddr}
    {budget(1)}
    s_cbranch_scc1 OK{n}
    s_waitcnt lgkmcnt(0)
    v_cmp_gt_u32 vcc, {val}, v{vd}
    s_cbranch_vccnz RE{n}
    OK{n}:"""

def cost(t):
    op = t.split()[0]
    if op.startswith('@') or op.endswith(':'): return 0
    if op.startswith(('v_exp', 'v_rcp', 'v_rsq')): return 8
    if op.startswith('v_mfma'): return 32
    if op.startswith(('buffer_', 'global_')): return 12
    if op.startswith('ds_'): return 8
    return 4
def gcost(it): return sum(cost(l.strip()) for l in it.split('\n') if l.strip())
def spread(fill, items, lo, hi):
    tot = sum(gcost(it) for it in items); acc = 0; n = hi - lo
    for it in items:
        c = gcost(it)
        fill.setdefault(lo + min(n - 1, int((acc + c/2) * n / max(tot, 1))), []).append(it)
        acc += c

def decode(a):
    a(f"""s_lshr_b32 s{S_IDX}, s{S_T}, 2
    s_lshr_b32 s{S_TYPE}, s{S_IDX}, 2
    s_and_b32 s{S_IDX}, s{S_IDX}, 3
    s_bfe_u32 s{T1}, s2, {0x10000 if P.mapn else 0x10002}
    s_lshl2_add_u32 s{S_IDX}, s{T1}, s{S_IDX}""")

def prologue(a):
    a(f"""s_load_dwordx16 s[4:19], s[0:1], 0
    s_load_dwordx2 s[20:21], s[0:1], 64
    s_cmp_ge_u32 s2, 256
    s_cbranch_scc1 K_END""")
    stamp_init(a)
    a(f"""s_getpc_b64 s[24:25]
    v_lshrrev_b32 v3, 5, v0
    s_lshr_b32 s{S_T}, s2, 3
    v_lshlrev_b32 v2, 7, v3
    v_lshl_add_u32 v2, s{S_T}, 11, v2
    v_min_u32 v2, CODE_BYTES-256, v2
    global_load_dword v47, v2, s[24:25]
    v_lshrrev_b32 v3, 6, v0
    v_and_b32 v0, 63, v0
    v_readfirstlane_b32 s{S_TYPE}, v3
    s_bfe_u32 s{T0}, s2, {0x20001 if P.mapn else 0x20000}
    s_and_b32 s{T1}, s{S_T}, 3
    s_lshl2_add_u32 s{S_I}, s{T0}, s{T1}
    s_lshr_b32 s{T0}, s{S_T}, 2
    s_lshl1_add_u32 s{S_ROT}, s{T1}, s{T0}
    s_and_b32 s{S_ROT}, s{S_ROT}, 7
    s_and_b32 s{S_WV}, s{S_TYPE}, 3
    v_lshrrev_b32 v1, 3, v0
    v_and_b32 v2, 7, v0
    v_lshrrev_b32 v4, 4, v0
    s_cmp_ge_u32 s{S_TYPE}, 4
    s_cbranch_scc1 G2_START
    @save top""")

X = 128; ACC = [64, 96]; WF = 40; PK = 24; TMP = 12
S_XROW, S_XLDS, S_XCH, S_A2B, S_COL0, S_C1, S_C2, S_ST, S_XLD2 = 56, 57, 58, 59, 60, 64, 65, 66, 67
S_MASK, S_FLA, S_KVF, S_KVW = 68, 70, 72, 74

def g1_start(a):
    XV = 64; XA = 68; ST = 76
    a(f"""v_xor_b32 v5, v2, v4
    v_lshlrev_b32 v5, 4, v5
    v_lshl_add_u32 v{XV}, v1, 10, v5
    v_xor_b32 v{XV+1}, 64, v{XV}
    v_add_u32 v{XV+1}, 7168, v{XV+1}
    v_add_u32 v{XV+2}, 14336, v{XV}
    v_add_u32 v{XV+3}, 14336, v{XV+1}
    s_lshl2_add_u32 s{T0}, s{S_I}, s{S_WV}
    s_lshl_b32 s{S_XROW}, s{T0}, 15
    s_lshl_b32 s{S_XLDS}, s{S_WV}, 14
    s_lshl_b32 s{S_XCH}, s{S_ROT}, 7
    s_mov_b32 s{R_X+2}, {2048*1024}
    s_mov_b32 s{R_X+3}, 0x20000
    s_mov_b32 m0, s{S_XLDS}
    s_add_u32 s{T1}, s{S_XROW}, s{S_XCH}
    s_waitcnt lgkmcnt(0)
    s_mov_b64 s[{R_X}:{R_X+1}], s[{S_X}:{S_X+1}]""")
    def xdma(c):
        if c:
            a(f"""s_add_u32 s{S_XCH}, s{S_XCH}, 128
            s_and_b32 s{S_XCH}, s{S_XCH}, 1023
            s_add_u32 m0, s{S_XLDS if c < 4 else S_XLD2}, {(c&3)*4096}
            s_add_u32 s{T1}, s{S_XROW}, s{S_XCH}""")
        for q in range(4):
            a(f"buffer_load_dwordx4 v{XV+q}, s[{R_X}:{R_X+3}], s{T1} offen offset:{q*1024} lds ; @tag x{c}")
    xdma(0)
    stamp(a, 'g1_karg')
    xdma(1)
    if P.prio_g1: a(f"s_setprio {P.prio_g1}")
    decode(a)
    srd(a, R_WS, S_WS, WS_USED)
    a(f"""s_mov_b32 s{S_BUD}, {P.spin}
    s_add_u32 s{S_XLD2}, s{S_XLDS}, {RING+16384}
    s_mul_i32 s{S_A2B}, s{T0}, {TBS}
    s_lshr_b32 s{T1}, s{T0}, 1
    s_lshr_b32 s{T2}, s{S_IDX}, 1
    s_lshl2_add_u32 s{T1}, s{T1}, s{T2}
    s_lshl_b32 s{T1}, s{T1}, 7
    s_and_b32 s{T0}, s{T0}, 1
    s_and_b32 s{T2}, s{S_IDX}, 1
    s_lshl1_add_u32 s{T0}, s{T2}, s{T0}
    s_lshl2_add_u32 s{T0}, s{T0}, s{T1}
    s_add_u32 s{T0}, s{T0}, {FL_H}
    s_add_u32 s{S_FLA}, s{S_WS}, s{T0}
    s_addc_u32 s{S_FLA+1}, s{S_WS+1}, 0""")
    a(f"""v_and_b32 v6, 31, v0
    v_lshrrev_b32 v7, 5, v0
    v_bfe_u32 v8, v0, 1, 3
    v_lshlrev_b32 v9, 7, v6
    v_add_u32 v9, s{S_XLDS}, v9""")
    for t in range(4):
        a(f"""v_add_u32 v10, {2*t}, v7
        v_xor_b32 v10, v10, v8
        v_lshl_add_u32 v{XA+t}, v10, 4, v9
        v_add_u32 v{XA+4+t}, {RING+16384}, v{XA+t}""")
    a(f"""v_bfe_u32 v8, v0, 2, 2
    v_lshl_add_u32 v9, v7, 3, v8
    v_and_b32 v10, 1, v4
    v_and_b32 v11, 3, v0
    v_lshlrev_b32 v10, 5, v10
    v_lshl_add_u32 v10, v11, 3, v10
    v_lshl_add_u32 v6, v9, 6, v10
    v_add_u32 v6, {RING}, v6
    v_lshrrev_b32 v8, 1, v8
    v_lshlrev_b32 v8, 6, v8
    v_xor_b32 v10, v10, v8
    v_lshl_add_u32 v2, v9, 7, v10
    v_add_u32 v2, {RING}, v2
    v_xor_b32 v3, 64, v2
    v_add_u32 v4, 0x10000, v2
    v_add_u32 v5, 0x10000, v3
    v_lshlrev_b32 v1, 4, v0
    s_mov_b32 s{S_C1}, 0x3f803f80""")
    for e in range(4): a(f"v_mov_b32 v{ST+e}, 0")
    for c in range(2, P.xla): xdma(c)
    def stats(c):
        for d in range(16):
            r = X+16*c+d
            a(f"v_dot2_f32_bf16 v{ST+(d&1)}, v{r}, s{S_C1}, v{ST+(d&1)}")
            a(f"v_dot2_f32_bf16 v{ST+2+(d&1)}, v{r}, v{r}, v{ST+2+(d&1)}")
    for c in range(8):
        a(f"@wait_vm x{c}")
        if c == 0: stamp(a, 'g1_x0')
        for t in range(4):
            a(f"ds_read_b128 {vr(X+16*c+4*t,4)}, v{XA+t+(4 if c >= 4 else 0)} offset:{(c&3)*4096}")
        if c + P.xla < 8:
            xdma(c + P.xla)
            if c + P.xla == 7: a("s_barrier")
        if c: stats(c - 1)
    a("@wait_lgkm xr")
    a("s_barrier")
    stats(7)
    stamp(a, 'g1_xdone')
    a(f"""v_add_f32 v10, v{ST}, v{ST+1}
    v_add_f32 v8, v{ST+2}, v{ST+3}
    v_mov_b32 v11, v10
    v_mov_b32 v9, v8
    s_cmp_eq_u32 s{S_TYPE}, 0
    s_mov_b32 s{T0}, {hx(LOG2E)}
    v_permlane32_swap_b32 v10, v11
    v_permlane32_swap_b32 v8, v9
    s_cselect_b32 s{T0}, s{T0}, {hx(-LOG2E)}
    v_add_f32 v10, v10, v11
    v_add_f32 v8, v8, v9
    v_mul_f32 v10, {hx(1/512)}, v10
    v_mul_f32 v8, {hx(1/512)}, v8
    v_fma_f32 v8, -v10, v10, v8
    v_max_f32 v8, 0, v8
    v_add_f32 v8, {hx(1e-5)}, v8
    v_rsq_f32 v8, v8
    s_mov_b32 s{S_C2}, 0xffff0000
    v_mul_f32 v8, s{T0}, v8
    v_mul_f32 v10, -v10, v8
    v_mov_b32 v9, v8
    v_mov_b32 v11, v10""")
    for ks in range(32):
        if ks == 12: a(nonce_load())
        for d in range(4):
            r = X+4*ks+d; t = TMP + 2*d
            a(f"v_lshlrev_b32 v{t}, 16, v{r}")
            a(f"v_and_b32 v{t+1}, s{S_C2}, v{r}")
        for d in range(4):
            t = TMP + 2*d
            a(f"v_pk_fma_f32 {vr(t,2)}, {vr(t,2)}, v[8:9], v[10:11]")
        for d in range(4):
            t = TMP + 2*d
            a(f"v_cvt_pk_bf16_f32 v{X+4*ks+d}, v{t}, v{t+1}")
    a(nonce_check())
    stamp(a, 'g1_ln')
    a(f"""s_cmp_eq_u32 s{S_TYPE}, 0
    s_cbranch_scc1 G1_A
    @save g1""")

def g1_main(a, units, fill, lastbar):
    slots = []; tile0 = 0
    for (half, wa, buf) in units:
        for ks in range(32):
            if half: slots.append((tile0 + ks//16, (ks % 16)*1024, 0, True, ACC[buf], ks, wa))
            else:
                for b in range(2): slots.append((tile0 + ks//8, (ks % 8)*2048, b, False, ACC[buf]+16*b, ks, wa))
        tile0 += 2 if half else 4
    def rd(n):
        tile, off, b, half, acc, ks, wa = slots[n]
        if n % 16 == 0 and tile <= lastbar:
            for it in fill.get(('bar', tile), []): a(it)
            stamp(a, f'g1_b{tile}')
            a("s_barrier")
        sl = tile % NRING
        f = WF + 4*(n % P.NWF)
        if half:
            assert sl < 4
            ad = 6; o = sl*16384 + off; o2 = o + 256
        else:
            ad = (2 if sl < 4 else 4) + b; o = (sl % 4)*16384 + off; o2 = o + 512
        a(f"ds_read_b64_tr_b16 {vr(f,2)}, v{ad} offset:{o}")
        a(f"ds_read_b64_tr_b16 {vr(f+2,2)}, v{ad} offset:{o2}")
    for n in range(P.LA): rd(n)
    for n, (tile, off, b, half, acc, ks, wa) in enumerate(slots):
        f = WF + 4*(n % P.NWF)
        A, B = (vr(f,4), vr(X+4*ks,4)) if wa else (vr(X+4*ks,4), vr(f,4))
        a(f"{MF} {vr(acc,16)}, {A}, {B}, {'0' if ks == 0 else vr(acc,16)}")
        if n + P.LA < len(slots): rd(n + P.LA)
        for it in fill.get(n, []): a(it)
        if n % 64 == 63 or n == len(slots) - 1: stamp(a, ['g1_u0','g1_u1','g1_u2','g1_7'][n//64])

def silu_ops(acc, nb, un, O=24):
    T = 12
    out = [f"s_add_u32 s{S_ST}, s{S_A2B}, s{S_COL0+un}"]
    pend = []; late = []
    for p in range(8*nb):
        r0, r1 = acc+2*p, acc+2*p+1
        t0, t1 = T + 2*(p & 1), T + 2*(p & 1) + 1
        out.append(f"v_exp_f32 v{t0}, v{r0}")
        out.extend(pend)
        out += [f"v_exp_f32 v{t1}, v{r1}", f"v_add_f32 v{t0}, 1.0, v{t0}", f"v_rcp_f32 v{t0}, v{t0}",
                f"v_add_f32 v{t1}, 1.0, v{t1}", f"v_rcp_f32 v{t1}, v{t1}", f"v_mul_f32 v{r0}, v{t0}, v{r0}"]
        fr = p//4; o = O + 4*fr
        pend = [f"v_mul_f32 v{r1}, v{t1}, v{r1}", f"v_cvt_pk_bf16_f32 v{o+(p&3)}, v{r0}, v{r1}"]
        if p % 4 == 3 and P.hstore is not None:
            (late if P.cluster else pend).append(
                f"buffer_store_dwordx4 {vr(o,4)}, v1, s[{R_WS}:{R_WS+3}], s{S_ST} offen offset:{fr*1024} {P.hstore}")
    out.extend(pend)
    if late: out.append("\n".join(late))
    return out

def g1_f(a):
    fill = {}
    spread(fill, [f"s_mul_i32 s{T0}, s{S_IDX}, 14\ns_and_b32 s{T1}, s{S_IDX}, 1",
                  f"s_lshl1_add_u32 s{T2}, s{T1}, s{T0}\ns_lshl_b32 s{S_COL0}, s{T2}, 10",
                  f"s_add_u32 s{S_COL0+1}, s{S_COL0}, 4096\ns_add_u32 s{S_COL0+2}, s{S_COL0}, 8192",
                  f"s_cmp_eq_u32 s{T1}, 0\ns_cselect_b32 s{T1}, 12, 0",
                  f"s_add_u32 s{T0}, s{T0}, s{T1}\ns_lshl_b32 s{S_COL0+3}, s{T0}, 10"], 20, 30)
    spread(fill, silu_ops(ACC[0], 2, 0), 66, 128)
    spread(fill, silu_ops(ACC[1], 2, 1), 130, 192)
    ops2 = silu_ops(ACC[0], 2, 2)
    h = len(ops2)*P.e2frac//8
    spread(fill, ops2[:h], 194, 224)
    fill.setdefault(min(127 + P.pub_delay, 223), []).append("@wait_vm st0\n" + flag_set(S_FLA, 0))
    fill.setdefault(min(191 + P.pub_delay, 223), []).append("@wait_vm st1\n" + flag_set(S_FLA, 16))
    g1_main(a, [(False, True, 0), (False, True, 1), (False, True, 0), (True, True, 1)], fill, P.lastF)
    if P.prio_tail != P.prio_g1: a(f"s_setprio {P.prio_tail}")
    for op in ops2[h:]: a(op)
    for op in silu_ops(ACC[1], 1, 3, O=WF): a(op)
    stamp(a, 'g1_8')
    a("@wait_vm st2"); a(flag_set(S_FLA, 32))
    a("@wait_vm st3"); a(flag_set(S_FLA, 48))
    stamp(a, 'g1_9')
    stamp_out(a, 0)
    a("s_endpgm")

def phi_ops(acc, zacc):
    T = 12; S_C0, S_LN2 = S_COL0, S_COL0+1
    out = []; pend = []
    for p in range(16):
        r0, r1 = acc+2*p, acc+2*p+1
        t0, t1 = T + 2*(p & 1), T + 2*(p & 1) + 1
        out += [f"v_exp_f32 v{t0}, v{r0} clamp", f"v_max_f32 v{r0}, s{S_C0}, v{r0}"]
        out.extend(pend)
        out += [f"v_exp_f32 v{t1}, v{r1} clamp", f"v_max_f32 v{r1}, s{S_C0}, v{r1}",
                f"v_fmac_f32 v{t0}, s{S_LN2}, v{r0}", f"v_fmac_f32 v{t1}, s{S_LN2}, v{r1}"]
        pend = [f"v_cvt_pk_bf16_f32 v{PK+p}, v{t0}, v{t1}"]
        if zacc is not None and p >= 1:
            q = p - 1; z = zacc + q//8
            pend.append(f"v_dot2_f32_bf16 v{z}, v{PK+q}, s{S_C1}, {'0' if q % 8 == 0 else f'v{z}'}")
    out.extend(pend)
    if zacc is not None: out.append(f"v_dot2_f32_bf16 v{zacc+1}, v{PK+15}, s{S_C1}, v{zacc+1}")
    return out

def g1_a(a):
    S_C0, S_LN2, S_KVG, S_KVS = S_COL0, S_COL0+1, S_COL0+2, S_COL0+3
    MASK = f"s[{S_MASK}:{S_MASK+1}]"
    a("G1_A:")
    a("@restore g1")
    fill = {}
    def put(g, ops): fill.setdefault(g, []).extend(ops)
    spread(fill, [f"s_mov_b32 s{S_C0}, {hx(1e-6*LOG2E)}\ns_mov_b32 s{S_LN2}, {hx(LN2)}",
           f"s_mul_i32 s{S_KVG}, s{S_IDX}, {16*KV_SLOT}\ns_add_u32 s{S_KVG}, s{S_KVG}, {KV_OFF}",
           f"s_lshl2_add_u32 s{T0}, s{S_IDX}, s{S_WV}\ns_lshl_b32 s{T0}, s{T0}, 7",
           f"s_add_u32 s{T0}, s{T0}, {FL_KV}\ns_lshl2_add_u32 s{T1}, s{S_I}, s{T0}",
           f"s_add_u32 s{S_KVF}, s{S_WS}, s{T0}\ns_addc_u32 s{S_KVF+1}, s{S_WS+1}, 0",
           f"s_add_u32 s{S_KVW}, s{S_WS}, s{T1}\ns_addc_u32 s{S_KVW+1}, s{S_WS+1}, 0",
           f"s_mov_b32 s{S_MASK}, 0x0000ffff\ns_mov_b32 s{S_MASK+1}, 0x0000ffff",
           "v_bfe_u32 v8, v0, 4, 1", "v_lshlrev_b32 v8, 10, v8", "v_and_b32 v9, 15, v0", "v_lshl_add_u32 v8, v9, 4, v8",
           "v_lshl_add_u32 v8, v7, 8, v8", f"s_lshl_b32 s{T0}, s{S_WV}, 12\ns_add_u32 s{T0}, s{T0}, {MISC}\nv_add_u32 v8, s{T0}, v8",
           "v_lshlrev_b32 v11, 2, v0", f"v_add_u32 v11, {MISC}, v11", f"s_lshl_b32 s{T0}, s{S_WV}, 8\nv_add_u32 v9, s{T0}, v11",
           f"s_lshl_b32 s{T0}, s{S_WV}, 10\ns_add_u32 s{T1}, s{T0}, {MISC}\nv_add_u32 v10, s{T1}, v1",
           f"s_mul_i32 s{T1}, s{S_I}, {KV_SLOT}\ns_add_u32 s{S_ST}, s{T1}, s{S_KVG}",
           f"s_add_u32 s{S_KVS}, s{T0}, s{S_ST}"], 14, 58)
    Z = 16
    ops = phi_ops(ACC[0], Z)
    ops += [f"v_permlane32_swap_b32 v{Z}, v{Z+1}", f"v_add_f32 v{Z}, v{Z}, v{Z+1}", f"ds_write_b32 v9, v{Z}"]
    g7 = 16*7 - P.LA
    spread(fill, ops, 66, g7)
    fill[('bar', 7)] = ["@wait_lgkm zw"]
    put(g7, [f"ds_read_b32 v{12+p}, v11 offset:{p*256}" for p in range(4)])
    spread(fill, ["v_add_f32 v12, v12, v13", "v_add_f32 v14, v14, v15", f"v_subrev_u32 v11, {MISC-4096}, v11", "v_add_f32 v22, v12, v14"], g7 + 4, g7 + 8)
    V = ACC[1]; D = ACC[1] + 16; T = 12
    cv = [f"v_cvt_pk_bf16_f32 v{V+e}, v{V+2*e}, v{V+2*e+1}" for e in range(16)]
    def kvm(b): return [f"{MF} {vr(D,16)}, {vr(PK+8*b,4)}, {vr(V+8*b,4)}, 0", f"{MF} {vr(D,16)}, {vr(PK+8*b+4,4)}, {vr(V+8*b+4,4)}, {vr(D,16)}"]
    def sel(b):
        return ([f"v_cndmask_b32 v{T+e}, v{D+8+e}, v{D+e}, {MASK}" for e in range(8)],
                [f"ds_write_b128 v8, {vr(T+4*q,4)} offset:{b*2048+q*512}" for q in range(2)])
    g = 129; g9 = 16*9 - P.LA
    put(g, cv[:8]); put(g+1, cv[8:]); put(g+2, kvm(0))
    o, w = sel(0); put(g+5, o + kvm(1) + w)
    o, w = sel(1); put(min(g+8, g9-1), o + w)
    fill[('bar', 9)] = ["@wait_lgkm kvw"]
    g = g9
    put(g, [f"ds_read_b128 {vr(V+4*p,4)}, v10 offset:{p*4096}" for p in range(4)])
    ops = [f"v_add_f32 v{V+e}, v{V+e}, v{V+4+e}" for e in range(4)]
    ops += [f"v_add_f32 v{V+8+e}, v{V+8+e}, v{V+12+e}" for e in range(4)]
    ops += [f"v_add_f32 v{V+e}, v{V+e}, v{V+8+e}" for e in range(4)]
    ops += [f"buffer_store_dwordx4 {vr(V,4)}, v1, s[{R_WS}:{R_WS+3}], s{S_KVS} offen sc1",
            f"buffer_store_dword v22, v11, s[{R_WS}:{R_WS+3}], s{S_ST} offen sc1"]
    put(g+3, ops)
    put(g+5, [f"s_lshl2_add_u32 s{T0}, s{S_WV}, {AFL}\nv_mov_b32 v18, s{T0}", "v_mov_b32 v23, 0", "ds_write_b32 v18, v23"])
    put(g+6, ["v_and_b32 v19, 3, v0", "v_lshlrev_b32 v19, 2, v19", f"v_add_u32 v19, {AFL}, v19"])
    fill[('bar', 10)] = ["@wait_lgkm fz"]
    assert P.lastA >= 10
    spread(fill, ["v_and_b32 v21, 15, v0", "v_bfe_u32 v8, v0, 4, 1", f"v_mul_u32_u24 v9, {KV_SLOT}, v8",
           "v_lshl_add_u32 v9, v21, 4, v9", "v_lshl_add_u32 v9, v7, 8, v9", f"v_mul_u32_u24 v11, {KV_SLOT}, v21",
           "v_lshl_add_u32 v11, v8, 5, v11", "v_lshl_add_u32 v11, v7, 4, v11", f"v_subrev_u32 v8, {MISC-AFR}, v10", f"v_add_u32 v10, {AFR}, v1",
           "v_mov_b32 v23, 1",
           f"s_lshl2_add_u32 s{T0}, s{S_IDX}, 112\ns_lshl_b32 s{T0}, s{T0}, 10\ns_add_u32 s{S_ST}, s{T0}, s{S_A2B}",
           f"s_lshl_b32 s{T0}, s{S_WV}, 6\ns_add_u32 s{T0}, s{T0}, s{S_KVG}\ns_add_u32 s{S_KVS}, s{T0}, 4096",
           f"s_lshl_b32 s{T0}, s{S_WV}, 10\ns_add_u32 s{S_KVG}, s{T0}, s{S_KVG}"], g + 7, g + 22)
    put(min(g + 4 + P.kv_delay, 191), ["@wait_vm kvs\n" + flag_set(S_KVW, 0)])
    if P.kvpoll[0] < 0: put(191 + P.kvpoll[0], [poll_load(4, 16, S_KVF, 0)])
    g1_main(a, [(False, False, 0), (False, False, 1), (False, True, 0)], fill, P.lastA)
    if P.prio_tail != P.prio_g1: a(f"s_setprio {P.prio_tail}")
    ph = phi_ops(ACC[0], None)
    n1 = len(ph)*max(P.kvpoll[0], 0)//8; n2 = len(ph)*P.kvpoll[1]//8
    for op in ph[:n1]: a(op)
    if P.kvpoll[0] >= 0: a(poll_load(4, 16, S_KVF, 0))
    for op in ph[n1:n2]: a(op)
    stamp(a, 'g1_7')
    a(poll_check(4, 16, S_KVF, 0))
    stamp(a, 'g1_8')
    ZR = X + 64
    a(f"buffer_load_dwordx4 {vr(ZR,4)}, v11, s[{R_WS}:{R_WS+3}], s{S_KVS} offen sc1")
    for m in range(8):
        for q in range(2):
            a(f"buffer_load_dwordx4 {vr(X+8*m+4*q,4)}, v9, s[{R_WS}:{R_WS+3}], s{S_KVG} offen offset:{q*512} sc1")
        if m < 7: a(f"s_add_u32 s{S_KVG}, s{S_KVG}, {2*KV_SLOT}")
    for op in ph[n2:]: a(op)
    for sh in (1, 2, 4, 8):
        for e in range(4): a(f"v_add_f32 v{ZR+e}, v{ZR+e}, v{ZR+e} row_ror:{sh} row_mask:0xf bank_mask:0xf")
    for e in range(4): a(f"v_mov_b32 v{ZR+4+e}, v{ZR+e}")
    for e in range(4): a(f"v_permlane16_swap_b32 v{ZR+e}, v{ZR+4+e}")
    for e in range(4): a(f"v_cvt_pk_bf16_f32 v{ZR+e}, v{ZR+2*e}, v{ZR+2*e+1}")
    for m in range(1, 8):
        for e in range(8): a(f"v_add_f32 v{X+e}, v{X+e}, v{X+8*m+e}")
    for e in range(4): a(f"v_permlane16_swap_b32 v{X+e}, v{X+4+e}")
    for e in range(4): a(f"v_add_f32 v{X+e}, v{X+e}, v{X+4+e}")
    for e in range(2): a(f"v_cvt_pk_bf16_f32 v{X+e}, v{X+2*e}, v{X+2*e+1}")
    for e in range(2): a(f"v_mov_b32 v{X+2+e}, v{X+e}")
    for e in range(2): a(f"v_permlane16_swap_b32 v{X+e}, v{X+2+e}")
    for e in range(4): a(f"v_cndmask_b32 v{ZR+e}, v{ZR+e}, v{X+e}, {MASK}")
    a(f"ds_write_b128 v8, {vr(ZR,4)}")
    a("ds_write_b32 v18, v23")
    stamp(a, 'g1_9')
    a(lds_wait(21, 19, 1))
    for hd in range(4): a(f"ds_read_b128 {vr(WF+4*hd,4)}, v10 offset:{hd*1024}")
    for hd in range(4): a(f"{MF} {vr(64+16*hd,16)}, {vr(WF+4*hd,4)}, {vr(PK+4*hd,4)}, 0")
    for hd in range(4):
        d = 64+16*hd
        a(f"""v_add_f32 v16, {hx(1e-6)}, v{d+8}
        v_rcp_f32 v16, v16""")
        for e in range(8): a(f"v_mul_f32 v{d+e}, -v{d+e}, v16")
        for e in range(4): a(f"v_cvt_pk_bf16_f32 v{d+e}, v{d+2*e}, v{d+2*e+1}")
        a(f"buffer_store_dwordx4 {vr(d,4)}, v1, s[{R_WS}:{R_WS+3}], s{S_ST} offen offset:{hd*1024} sc1")
    stamp(a, 'g1_10')
    a("s_waitcnt vmcnt(0)")
    a(flag_set(S_FLA, 64))
    stamp(a, 'g1_11')
    stamp_out(a, 0)
    a("s_endpgm")

A2R = 8; B2R = 48; AC2 = 192
WV_F = AC2; WV_H = AC2 + 4; DUM = AC2 + 8
S_TH, S_THH, S_TO = 56, 64, 68
S_RB = 4; S_CB = 10; S_LW = 14; S_LX = 15; S_FH = 16
S_POLL = R_W

def g2_setup(a):
    a("G2_START:")
    a("@restore top")
    decode(a)
    a(f"""s_cmp_eq_u32 s{S_TYPE}, 0
    s_movk_i32 s{T0}, 3072
    s_cselect_b32 s{S_STRIDE}, s{T0}, 3584
    v_and_b32 v4, 1, v4
    v_lshlrev_b32 v5, 2, v4
    v_xor_b32 v5, v5, v2
    v_lshlrev_b32 v5, 4, v5
    v_mad_u32_u24 v{WV_F}, v1, s{S_STRIDE}, v5
    s_lshl_b32 s{T0}, s{S_STRIDE}, 3
    s_sub_u32 s{T0}, s{T0}, 1024
    v_add_u32 v{WV_F+1}, s{T0}, v{WV_F}
    v_add_u32 v{WV_F+2}, s{T0}, v{WV_F+1}
    v_add_u32 v{WV_F+3}, s{T0}, v{WV_F+2}
    v_lshrrev_b32 v8, 2, v0
    v_and_b32 v9, 3, v0
    v_lshlrev_b32 v10, 4, v9
    v_mad_u32_u24 v{WV_H}, v8, s{S_STRIDE}, v10
    s_lshl_b32 s{T0}, s{S_STRIDE}, 4
    s_sub_u32 s{T0}, s{T0}, 1024
    v_add_u32 v{WV_H+1}, s{T0}, v{WV_H}
    v_add_u32 v{WV_H+2}, s{T0}, v{WV_H+1}
    v_add_u32 v{WV_H+3}, s{T0}, v{WV_H+2}
    s_waitcnt lgkmcnt(0)
    s_mov_b32 s{S_BUD}, {P.spin}""")
    a(f"""s_or_b32 s{T0}, s2, s{S_WV}
    s_cbranch_scc1 G2_NONONCE
    s_add_u32 s56, s{S_WS}, {EPOCH}
    s_addc_u32 s57, s{S_WS+1}, 0
    s_load_dword s{S_NONCE}, s[56:57], 0 glc
    s_mov_b32 s{S_NONCE+1}, 1
    s_waitcnt lgkmcnt(0)
    s_mul_i32 s{S_NONCE}, s{S_NONCE}, 1664525
    s_add_u32 s{S_NONCE}, s{S_NONCE}, 1013904223
    s_atomic_swap_x2 s[{S_NONCE}:{S_NONCE+1}], s[{S_DBG}:{S_DBG+1}], 0
    s_atomic_swap s{S_NONCE}, s[56:57], 0
    s_waitcnt lgkmcnt(0)
    G2_NONONCE:""")
    if P.prio_g2: a(f"s_setprio {P.prio_g2}")
    a(f"""s_cmp_eq_u32 s{S_TYPE}, 0
    s_cselect_b64 s[{R_W}:{R_W+1}], s[{S_WQKV}:{S_WQKV+1}], s[{S_W1}:{S_W1+1}]
    s_lshl_b32 s{R_W+2}, s{S_STRIDE}, 9
    s_mov_b32 s{R_W+3}, 0x20000""")
    srd(a, R_X, S_X, 2048*1024)
    srd(a, R_WS, S_WS, WS_USED)
    srd(a, R_W2, S_W2, 1792*1024)
    srd(a, R_WO, S_WO, 512*1024)
    srd(a, R_OUT, S_OUT, 2048*1024)
    a(f"""s_cmp_eq_u32 s{S_WV}, 1
    s_cselect_b64 s[56:57], s[{S_W1}:{S_W1+1}], s[{S_WQKV}:{S_WQKV+1}]
    s_cselect_b32 s{T0}, 56, 48
    s_cmp_eq_u32 s{S_WV}, 2
    s_cselect_b64 s[56:57], s[{S_W2}:{S_W2+1}], s[56:57]
    s_cselect_b32 s{T0}, 56, s{T0}
    s_cmp_eq_u32 s{S_WV}, 3
    s_cselect_b64 s[56:57], s[{S_WO}:{S_WO+1}], s[56:57]
    s_cselect_b32 s{T0}, 16, s{T0}
    s_mul_i32 s{T1}, s{T0}, s2
    s_sub_u32 s{T0}, s{T0}, 1
    v_min_u32 v11, s{T0}, v0
    v_add_lshl_u32 v11, v11, s{T1}, 7
    v_mov_b32 v{DUM+1}, s57
    v_add_co_u32 v{DUM}, vcc, s56, v11
    v_addc_co_u32 v{DUM+1}, vcc, 0, v{DUM+1}, vcc""")
    a(f"""s_lshr_b32 s{T0}, s{S_WV}, 1
    s_add_u32 s{T0}, s{T0}, s{S_ROT}
    s_and_b32 s{T1}, s{S_WV}, 1
    s_lshl1_add_u32 s{T2}, s{T0}, s{T1}""")
    for tau in range(4):
        a(f"""s_add_u32 s{T0}, s{T2}, {4*tau}
        s_and_b32 s{T0}, s{T0}, 15
        s_lshl_b32 s{T0}, s{T0}, 5
        s_mul_i32 s{S_RB+tau}, s{T0}, s{S_STRIDE}""")
    for tau in range(2):
        a(f"""s_add_u32 s{T0}, s{S_ROT}, s{S_WV}
        s_add_u32 s{T0}, s{T0}, {4*tau}
        s_and_b32 s{T0}, s{T0}, 7
        s_lshl_b32 s{T0}, s{T0}, 6
        s_mul_i32 s{S_RB+4+tau}, s{T0}, s{S_STRIDE}""")
    a(f"""s_lshl_b32 s58, s{S_IDX}, 7
    s_mul_i32 s59, s{S_IDX}, 448
    s_and_b32 s60, s{S_IDX}, 1
    s_lshl_b32 s{T0}, s60, 6
    s_add_u32 s61, s{T0}, s59
    s_add_u32 s62, s58, 1024
    s_add_u32 s{T0}, s58, 2048
    s_add_u32 s{T1}, s61, 128
    s_add_u32 s{T2}, s61, 256
    s_cmp_eq_u32 s{S_TYPE}, 0
    s_cselect_b32 s{S_CB}, s62, s61
    s_cselect_b32 s{S_CB+1}, s{T0}, s{T1}
    s_cselect_b32 s{S_CB+2}, s58, s{T2}
    s_cmp_eq_u32 s60, 0
    s_cselect_b32 s{T0}, 384, 0
    s_add_u32 s{S_CB+3}, s59, s{T0}
    s_lshl_b32 s{S_LW}, s{S_WV}, 12
    s_add_u32 s{S_LW}, s{S_LW}, {RING}
    s_lshl_b32 s{S_LX}, s{S_WV}, 14""")
    a(f"""s_lshr_b32 s{T0}, s{S_IDX}, 2
    s_lshl1_add_u32 s{T0}, s{S_I}, s{T0}
    s_lshr_b32 s{T2}, s{S_T}, 2
    s_lshl_b32 s{T2}, s{T2}, 7
    v_lshl_add_u32 v1, v1, 10, v5
    v_add_u32 v1, s{T2}, v1
    v_add_u32 v2, 7168, v1
    s_lshl2_add_u32 s{T1}, s{T0}, s{S_WV}
    s_lshl_b32 s{T1}, s{T1}, 7
    s_add_u32 s{T1}, s{T1}, {FL_H}
    s_add_u32 s{S_FH}, s{S_WS}, s{T1}
    s_addc_u32 s{S_FH+1}, s{S_WS+1}, 0
    s_lshr_b32 s{T1}, s{S_WV}, 1
    s_lshl1_add_u32 s{T0}, s{T0}, s{T1}
    s_lshl_b32 s{S_STRIDE}, s{T0}, 15
    s_add_u32 s{S_STRIDE}, s{S_STRIDE}, s{T2}
    s_and_b32 s{T2}, s{S_WV}, 1
    s_lshl_b32 s{T2}, s{T2}, 6
    s_add_u32 s{S_STRIDE}, s{S_STRIDE}, s{T2}
    s_mul_i32 s{T1}, s{T0}, {TBS}
    v_lshlrev_b32 v6, 4, v0
    v_add_u32 v5, s{T1}, v6
    s_xor_b32 s{T0}, s{T0}, 1
    s_mul_i32 s{T1}, s{T0}, {TBS}
    v_add_u32 v6, s{T1}, v6
    v_lshrrev_b32 v10, 5, v0
    v_and_b32 v8, 3, v8
    v_lshl_add_u32 v10, v10, 2, v8
    v_lshlrev_b32 v4, 5, v4
    v_lshl_add_u32 v4, v9, 3, v4
    v_lshrrev_b32 v8, 1, v8
    v_lshlrev_b32 v8, 6, v8
    v_xor_b32 v4, v4, v8
    v_lshl_add_u32 v3, v10, 7, v4
    v_xor_b32 v3, s{T2}, v3
    s_add_u32 s{T0}, s{S_LW}, {MISC-RING}
    v_add_u32 v0, s{T0}, v3
    v_xor_b32 v7, 64, v0
    v_add_u32 v3, s{S_LX}, v3
    v_xor_b32 v4, 64, v3""")
    a(f"""s_lshr_b32 s{T2}, s{S_ROT}, 1
    s_mul_i32 s{S_I}, s{S_WV}, 28
    s_lshl_b32 s{S_IDX}, s{S_WV}, 3""")
    for j in range(8):
        a(f"""s_add_u32 s{T0}, s{S_ROT}, {j>>2}
        s_and_b32 s{T0}, s{T0}, 1
        s_add_u32 s{T1}, s{T2}, {j}
        s_and_b32 s{T1}, s{T1}, 3
        s_lshl4_add_u32 s{S_TH+j}, s{T0}, s{T1}
        s_add_u32 s{S_TH+j}, s{S_TH+j}, s{S_I}
        s_lshl_b32 s{S_TH+j}, s{S_TH+j}, 10
        s_lshl2_add_u32 s{S_TO+j}, s{T0}, s{T1}
        s_add_u32 s{S_TO+j}, s{S_TO+j}, s{S_IDX}
        s_lshl_b32 s{S_TO+j}, s{S_TO+j}, 10""")
    for j in range(4):
        a(f"""s_add_u32 s{T0}, s{T2}, {j}
        s_and_b32 s{T0}, s{T0}, 3
        s_add_u32 s{T0}, s{T0}, s{S_I}
        s_add_u32 s{T0}, s{T0}, 12
        s_lshl_b32 s{S_THH+j}, s{T0}, 10""")
    stamp(a, 'g2_setup')
    a("s_barrier")
    stamp(a, 'g2_bx1')

def step_info(s):
    if s < 24: return (S_TH + s % 8, (s//8)*4096, (s//8)*65536, R_W2)
    if s < 28: return (S_THH + s - 24, 0, 0, R_W2)
    return (S_TO + s - 28, 112*1024, 0, R_WO)

def g2_body(a, typ):
    NT = 14 if typ == 'F' else 12
    last = P.lastF if typ == 'F' else P.lastA
    SRES = S_STRIDE
    regsteps = [0, 1, 2] + list(range(11, 26))
    def breg(s): return B2R + 8*regsteps.index(s)
    order = P.border or (regsteps + list(range(3, 11)) + [34, 35])
    xo = [s for s in order if s < 34]
    assert sorted(xo[:18]) == regsteps and sorted(order) == list(range(26)) + [34, 35]
    slot = {s: k % 8 for k, s in enumerate(xo)}
    for s in range(26, 34): slot[s] = slot[s - 23]
    slot[34] = 8; slot[35] = 9
    nbar = [0]; nvm = [0]; defer = []
    lastrd = {}; owner = {}
    def flush(pred):
        idx = [k for k, d in enumerate(defer) if pred(d)]
        if idx:
            for d in defer[:idx[-1]+1]: b2rd(d[1], breg(d[1]))
            del defer[:idx[-1]+1]
    def vm(text, thr=True):
        if thr:
            flush(lambda d: d[0] <= nvm[0])
            a(f"@throttle {P.maxout}")
        a(text); nvm[0] += 1
    def wtile(t):
        half = t >= 12
        un, tau = (3, t - 12) if half else (t//4, t % 4)
        assert t < NRING or nbar[0] > t - 3, (t, nbar)
        stamp(a, f'g2_w{t}')
        a(f"""s_add_u32 m0, s{S_LW}, {(t % NRING)*16384}
        s_add_u32 s{T1}, s{S_CB+un}, s{S_RB+(4 if half else 0)+tau}""")
        for q in range(4):
            vm(f"buffer_load_dwordx4 v{(WV_H if half else WV_F)+q}, s[{R_W}:{R_W+3}], s{T1} offen offset:{q*1024} lds ; @tag w{t}")
    def b2dma(s, thr=True):
        sl = slot[s]
        if sl in owner: flush(lambda d: d[1] == owner[sl])
        if sl in lastrd: a(f"@wait_lgkm {lastrd[sl]}")
        owner[sl] = s
        tb, _, c2, R = step_info(s)
        if sl >= 8:
            assert typ == 'F' or nbar[0] > 10
            a(f"s_add_u32 m0, s{S_LW}, {MISC - RING + (sl-8)*2048}")
        else: a(f"s_add_u32 m0, s{S_LX}, {sl*2048}")
        a(f"s_lshl4_add_u32 s{T1}, s{tb}, {c2}")
        for q in range(2):
            if P.nob2 and thr: continue
            vm(f"buffer_load_dwordx4 v{1+q}, s[{R}:{R+3}], s{T1} offen offset:{q*1024} lds ; @tag b{s}", thr)
        if s in regsteps: defer.append((nvm[0] + P.maxout, s))
    def b2rd(s, dst):
        sl = slot[s]; o = (sl % 8)*2048
        a(f"@wait_vm b{s}")
        for be in range(2):
            ad = (3, 4)[be] if sl < 8 else (0, 7)[be]
            a(f"ds_read_b64_tr_b16 {vr(dst+4*be,2)}, v{ad} offset:{o} ; @tag r{s}")
            a(f"ds_read_b64_tr_b16 {vr(dst+4*be+2,2)}, v{ad} offset:{o+1024} ; @tag r{s}")
        lastrd[sl] = f"r{s}"
    prog = (P.progF if typ == 'F' else P.progA).replace(' ', '')
    assert prog.count('W') == NT and prog.count('B') == 28 and prog.count('|') == 1 and prog.count('P') == 1 \
        and prog.count('.') == last + 1 and prog.index('P') > prog.rindex('W'), prog
    nw = nb = 0; bar = False
    for c in prog:
        if c == 'W':
            assert bar or nw == 0
            wtile(nw); nw += 1
        elif c == 'B':
            assert bar
            b2dma(order[nb]); nb += 1
        elif c == 'D':
            vm(f"global_load_dword v{DUM+2}, {vr(DUM,2)}, off")
        elif c == '|':
            a("s_barrier"); bar = True
            a(nonce_load())
        elif c == '.':
            k = nbar[0]
            need = k if k < last else NT - 1
            assert nw > need
            a(f"@wait_vm w{need}")
            if k == 0: a(nonce_check())
            stamp(a, f'g2_e{k}')
            a("s_barrier")
            stamp(a, f'g2_t{k}')
            nbar[0] += 1
        elif c == 'P': a(poll_load(S_POLL, 4, S_FH, 0))
        else: raise ValueError(c)
    flush(lambda d: True)
    stamp(a, 'g2_p1end')
    if P.prio_g2b != P.prio_g2: a(f"s_setprio {P.prio_g2b}")
    stage = {0: 0, 8: 1, 16: 2, 24: 3, 28: 4}
    pollat = {max(s - P.pa, prev): k for (s, k), prev in zip(list(stage.items())[1:], stage)}
    def a2ld(s):
        if s in stage:
            stamp(a, f'g2_pre{s}')
            a(poll_check(S_POLL, 4, S_FH, 16*stage[s]))
            stamp(a, f'g2_c{s}')
        if s in pollat: a(poll_load(S_POLL, 4, S_FH, 16*pollat[s]))
        tb, c1, _, _ = step_info(s)
        so = tb
        if c1:
            a(f"s_add_u32 s{T2}, s{tb}, {c1}"); so = T2
        for th in range(2):
            if s < P.thr2_until: a(f"@throttle {P.thr2}")
            a(f"buffer_load_dwordx4 {vr(A2R+8*(s%P.RD)+4*th,4)}, v{5+th}, s[{R_WS}:{R_WS+3}], s{so} offen sc1")
    for s in range(P.RD): a2ld(s)
    XA = breg(11); XR = breg(12)
    for s in range(36):
        stamp(a, f'g2_s{s}')
        bf = breg(s) if s in regsteps else B2R + 8*(s % 3)
        a(f"@need {vr(bf,8)}")
        for th in range(2):
            for be in range(2):
                acc = AC2 + 16*(2*th+be)
                a(f"{MF} {vr(acc,16)}, {vr(bf+4*be,4)}, {vr(A2R+8*(s%P.RD)+4*th,4)}, {'0' if s == 0 else vr(acc,16)}")
                if th == 0 and be == 0 and s + 2 < 36 and s + 2 not in regsteps: b2rd(s + 2, B2R + 8*((s+2) % 3))
        if 3 <= s < 11: b2dma(s + 23, thr=False)
        if s + P.RD < 36: a2ld(s + P.RD)
        if s == 14:
            a(f"""v_mbcnt_lo_u32_b32 v{XA+1}, -1, 0
            v_mbcnt_hi_u32_b32 v{XA+1}, -1, v{XA+1}
            v_and_b32 v{XA}, 31, v{XA+1}
            v_lshlrev_b32 v{XA}, 10, v{XA}
            v_lshrrev_b32 v{XA+2}, 5, v{XA+1}
            v_lshl_add_u32 v{XA}, v{XA+2}, 4, v{XA}
            v_lshlrev_b32 v{XA+1}, 4, v{XA+1}
            v_add_u32 v{XA+2}, s{S_LX}, v{XA+1}""")
        if s == 31:
            a(f"""buffer_load_dwordx4 {vr(XR,4)}, v{XA}, s[{R_X}:{R_X+3}], s{SRES} offen
            buffer_load_dwordx4 {vr(XR+4,4)}, v{XA}, s[{R_X}:{R_X+3}], s{SRES} offen offset:32""")
    stamp(a, 'g2_mend')
    for tau in range(1, 4):
        for q in range(4): a(f"ds_write_b128 v{XA+2}, {vr(AC2+16*tau+4*q,4)} offset:{(tau-1)*4096+q*1024}")
    for tau in range(1, 4):
        a(f"""s_xor_b32 s{T0}, s{S_WV}, {tau}
        s_lshl_b32 s{T0}, s{T0}, 14
        v_add_u32 v{8+tau}, s{T0}, v{XA+1}""")
    a(f"""s_mov_b32 s{T0}, {hx(-LN2)}
    s_mov_b32 s{T1}, 0xffff0000""")
    for p in range(2):
        a(f"v_permlane32_swap_b32 v{XR+4*p}, v{XR+4*p+2}")
        a(f"v_permlane32_swap_b32 v{XR+4*p+1}, v{XR+4*p+3}")
    UU = 16
    for d in range(8):
        a(f"""v_lshlrev_b32 v{UU+2*d}, 16, v{XR+d}
        v_and_b32 v{UU+2*d+1}, s{T1}, v{XR+d}""")
    for e in range(16): a(f"v_fmac_f32 v{UU+e}, s{T0}, v{AC2+e}")
    a("s_waitcnt lgkmcnt(0)")
    stamp(a, 'g2_tb')
    a("s_barrier")
    stamp(a, 'g2_ta')
    for q in range(4):
        for tau in range(1, 4): a(f"ds_read_b128 {vr(AC2+16*tau+4*q,4)}, v{8+tau} offset:{(tau-1)*4096+q*1024}")
    for p in range(2):
        for q in (2*p, 2*p+1):
            for tau in range(1, 4):
                for e in range(4): a(f"v_fmac_f32 v{UU+4*q+e}, s{T0}, v{AC2+16*tau+4*q+e}")
        for d in range(4): a(f"v_cvt_pk_bf16_f32 v{XR+4*p+d}, v{UU+8*p+2*d}, v{UU+8*p+2*d+1}")
        a(f"v_permlane32_swap_b32 v{XR+4*p}, v{XR+4*p+2}")
        a(f"v_permlane32_swap_b32 v{XR+4*p+1}, v{XR+4*p+3}")
        a(f"buffer_store_dwordx4 {vr(XR+4*p,4)}, v{XA}, s[{R_OUT}:{R_OUT+3}], s{SRES} offen offset:{32*p}")
    stamp(a, 'g2_end')
    stamp_out(a, 1)
    a("s_endpgm")

def kernel():
    U.n = 0
    a = Asm()
    prologue(a)
    g1_start(a)
    g1_f(a)
    g1_a(a)
    g2_setup(a)
    a(f"""s_cmp_eq_u32 s{S_TYPE}, 0
    s_cbranch_scc1 G2_A
    @save g2""")
    g2_body(a, 'F')
    a("G2_A:")
    a("@restore g2")
    g2_body(a, 'A')
    a("K_END:")
    a("s_endpgm")
    return a.finish()

def build():
    kn = NAME + "_kernel"
    s = HEADER
    s += "; @launch grid=(256,1,1) block=(512,1,1) lds=163840\n"
    s += '.amdgcn_target "amdgcn-amd-amdhsa--gfx950"\n.text\n'
    s += entry(kn) + kernel()
    s += f"K_LAST:\n.set CODE_BYTES, K_LAST-{kn}\n"
    s += '.section .rodata,"a"\n.p2align 6\n' + kd(kn)
    return s
if __name__ == "__main__":
    for kv in sys.argv[2:]:
        k, v = kv.split("=", 1)
        assert hasattr(P, k), k
        setattr(P, k, eval(v))
    txt = build()
    open(sys.argv[1], "w").write(txt)
```

```python
import sys
from asmlib import Asm
from common import *

class P:
    stamp = False
    clk = 's_memrealtime'
    LA = 5; NWF = 6
    maxout = 7
    RD = 5
    pa = 5
    prio_g1 = 1; prio_tail = 3; prio_g2 = 0; prio_g2b = 0
    spin = 1 << 22
    pub_delay = 24; kv_delay = 26
    kvpoll = (0, 6)
    e2frac = 5
    xla = 3
    cluster = True
    lastF = 12; lastA = 10
    mapn = 0
    ntx = 6
    sm_g2 = [[], [], [], []]
    sm_g1 = {}
    hi0 = 128; hi1 = 192
    hold = {}
    dlines = (48, 56, 56, 16)
    dskip = (0, 0)
    dmode = 0
    pad = 256
    oflag = ''
    border = None
    progF = 'DW|WWWW . BBB . BBB . WB . WB . WBB . WBB . WBB . WBB . WBB . WBB . WBB . BBBP . BBB'
    progA = 'DW|WWWW . BBB . BBB . WB . WB . WBB . WBB . WBB . WBB . WBBB . BBBB . BPBBBB'
    thr2 = 9; thr2_until = 0
    sleep = 1
    nopoll = False; nob2 = False; hstore = 'sc1'
    st1 = ['g1_x0', 'g1_xdone', 'g1_ln', 'g1_u0', 'g1_u1', 'g1_u2', 'g1_7', 'g1_9', 'g1_11']
    st2 = ['g2_setup', 'g2_e0', 'g2_p1end', 'g2_s1', 'g2_c8', 'g2_c16', 'g2_c28', 'g2_mend', 'g2_end']

TBS = 144*1024
KV_OFF = 64*TBS; KV_SLOT = 4352
FL_H = KV_OFF + 128*KV_SLOT
FL_KV = FL_H + 16384
EPOCH = FL_KV + 4096
WS_USED = EPOCH + 128
TS_OFF = 128 << 20
RING = 0x10000; NRING = 5; MISC = 0x24000
AFR = RING + 2*16384; AFL = AFR + 4096
MF = "v_mfma_f32_32x32x16_bf16"
S_X, S_WQKV, S_WO, S_W1, S_W2, S_OUT, S_DBG, S_WS = 4, 6, 8, 12, 14, 16, 18, 20
R_X, R_W, R_WS, R_W2, R_WO, R_OUT = 24, 28, 32, 36, 40, 44
S_BUD, S_WV, S_I, S_IDX, S_TYPE, S_ROT, S_STRIDE, S_T, S_NONCE = 0, 3, 22, 23, 48, 49, 50, 51, 52
T0, T1, T2 = 54, 55, 1

def srd(a, d, base, size):
    a(f"""s_mov_b64 s[{d}:{d+1}], s[{base}:{base+1}]
    s_mov_b32 s{d+2}, {size}
    s_mov_b32 s{d+3}, 0x20000""")

NST = 10
S_DUM = 100
def stamp(a, name):
    if not P.stamp: return
    for lst in (P.st1, P.st2):
        if name in lst:
            n = lst.index(name) + 1
            a(f"{P.clk} s[{78+2*n}:{79+2*n}]")
def stamp_init(a):
    if not P.stamp: return
    a("s_memrealtime s[76:77]")
    a(f"{P.clk} s[78:79]")
    for n in range(1, NST): a(f"s_mov_b32 s{78+2*n}, 0")
def stamp_out(a, role):
    if not P.stamp: return
    a(f"""s_waitcnt vmcnt(0) lgkmcnt(0)
    {P.clk} s[56:57]
    s_memrealtime s[58:59]
    s_lshl_b32 s{T0}, s2, 3
    s_add_u32 s{T0}, s{T0}, s{S_WV}
    s_add_u32 s{T0}, s{T0}, {4*role}
    s_lshl_b32 s{T0}, s{T0}, 6
    s_add_u32 s{T0}, s{T0}, {TS_OFF}
    v_mov_b32 v1, s{T0}
    s_waitcnt lgkmcnt(0)""")
    srcs = [f"s{78+2*n}" for n in range(NST)] + ["0", "0", "0", "s56", "s58", "s76"]
    for n, s in enumerate(srcs):
        a(f"v_mov_b32 v2, {s}")
        a(f"global_store_dword v1, v2, s[{S_WS}:{S_WS+1}] offset:{4*n}")

class U: n = 0
def uid():
    U.n += 1; return U.n

def budget(n):
    return f"""s_sub_u32 s{S_BUD}, s{S_BUD}, {n}
    s_cmp_lt_i32 s{S_BUD}, 0"""

def nonce_load():
    return f"s_load_dwordx2 s[{S_NONCE}:{S_NONCE+1}], s[{S_DBG}:{S_DBG+1}], 0"
def nonce_check():
    n = uid()
    return f"""RE{n}:
    s_waitcnt lgkmcnt(0)
    s_cmp_lg_u32 s{S_NONCE+1}, 0
    s_cbranch_scc1 OK{n}
    s_sleep 4
    s_load_dwordx2 s[{S_NONCE}:{S_NONCE+1}], s[{S_DBG}:{S_DBG+1}], 0 glc
    {budget(16)}
    s_cbranch_scc0 RE{n}
    s_waitcnt lgkmcnt(0)
    OK{n}:
    s_mov_b32 s{S_NONCE+1}, s{S_NONCE}"""
def flag_set(base, off):
    return f"s_atomic_swap s{S_NONCE}, s[{base}:{base+1}], {off}"
def poll_load(dst, nw, base, off):
    if P.nopoll: return ""
    return f"s_load_dwordx{nw} s[{dst}:{dst+nw-1}], s[{base}:{base+1}], {off} glc"
def poll_check(dst, nw, base, off):
    if P.nopoll: return ""
    n = uid()
    NP = f"s[{S_NONCE}:{S_NONCE+1}]"
    t = [f"s_xor_b64 s[{dst+2*k}:{dst+2*k+1}], s[{dst+2*k}:{dst+2*k+1}], {NP}" for k in range(nw//2)]
    t += [f"s_or_b64 s[{dst}:{dst+1}], s[{dst}:{dst+1}], s[{dst+2*k}:{dst+2*k+1}]" for k in range(1, nw//2)]
    t = "\n".join(t)
    return f"""RE{n}:
    s_waitcnt lgkmcnt(0)
    {t}
    s_cbranch_scc0 OK{n}
    {f's_sleep {P.sleep}' if P.sleep else ''}
    {poll_load(dst, nw, base, off)}
    {budget(16)}
    s_cbranch_scc0 RE{n}
    s_waitcnt lgkmcnt(0)
    OK{n}:"""
def lds_wait(vd, vaddr, val):
    n = uid()
    return f"""RE{n}:
    ds_read_b32 v{vd}, v{vaddr}
    {budget(1)}
    s_cbranch_scc1 OK{n}
    s_waitcnt lgkmcnt(0)
    v_cmp_gt_u32 vcc, {val}, v{vd}
    s_cbranch_vccnz RE{n}
    OK{n}:"""

def cost(t):
    op = t.split()[0]
    if op.startswith('@') or op.endswith(':'): return 0
    if op.startswith(('v_exp', 'v_rcp', 'v_rsq')): return 8
    if op.startswith('v_mfma'): return 32
    if op.startswith(('buffer_', 'global_')): return 12
    if op.startswith('ds_'): return 8
    return 4
def gcost(it): return sum(cost(l.strip()) for l in it.split('\n') if l.strip())
def spread(fill, items, lo, hi):
    tot = sum(gcost(it) for it in items); acc = 0; n = hi - lo
    for it in items:
        c = gcost(it)
        fill.setdefault(lo + min(n - 1, int((acc + c/2) * n / max(tot, 1))), []).append(it)
        acc += c

SM = {'q': (S_WQKV, 6144), '1': (S_W1, 7168), '2': (S_W2, 7168), 'o': (S_WO, 2048)}
def smem_base(a, arr, dst):
    ptr, share = SM[arr]
    a(f"""s_mul_i32 s{dst}, s2, {share}
    s_lshl_b32 s{dst+1}, s{S_WV}, 7
    s_add_u32 s{dst}, s{dst}, s{dst+1}
    s_add_u32 s{dst}, s{dst}, s{ptr}
    s_addc_u32 s{dst+1}, s{ptr+1}, 0""")
def smem_loads(a, lst, bases):
    for arr, k0, n in lst:
        for k in range(k0, k0 + n):
            a(f"s_load_dwordx2 s[{S_DUM}:{S_DUM+1}], s[{bases[arr]}:{bases[arr]+1}], {k*512+60}")

def decode(a):
    a(f"""s_lshr_b32 s{S_IDX}, s{S_T}, 2
    s_lshr_b32 s{S_TYPE}, s{S_IDX}, 2
    s_and_b32 s{S_IDX}, s{S_IDX}, 3
    s_bfe_u32 s{T1}, s2, {0x10000 if P.mapn else 0x10002}
    s_lshl2_add_u32 s{S_IDX}, s{T1}, s{S_IDX}""")

def prologue(a):
    a(f"""s_load_dwordx16 s[4:19], s[0:1], 0
    s_load_dwordx2 s[20:21], s[0:1], 64
    s_cmp_ge_u32 s2, 256
    s_cbranch_scc1 K_END""")
    stamp_init(a)
    a(f"""s_getpc_b64 s[24:25]
    v_lshrrev_b32 v3, 5, v0
    s_lshr_b32 s{S_T}, s2, 3
    v_lshlrev_b32 v2, 7, v3
    v_lshl_add_u32 v2, s{S_T}, 11, v2
    v_min_u32 v2, CODE_BYTES-256, v2
    global_load_dword v47, v2, s[24:25]
    v_lshrrev_b32 v3, 6, v0
    v_and_b32 v0, 63, v0
    v_readfirstlane_b32 s{S_TYPE}, v3
    s_bfe_u32 s{T0}, s2, {0x20001 if P.mapn else 0x20000}
    s_and_b32 s{T1}, s{S_T}, 3
    s_lshl2_add_u32 s{S_I}, s{T0}, s{T1}
    s_lshr_b32 s{T0}, s{S_T}, 2
    s_lshl1_add_u32 s{S_ROT}, s{T1}, s{T0}
    s_and_b32 s{S_ROT}, s{S_ROT}, 7
    s_and_b32 s{S_WV}, s{S_TYPE}, 3
    v_lshrrev_b32 v1, 3, v0
    v_and_b32 v2, 7, v0
    v_lshrrev_b32 v4, 4, v0
    s_cmp_ge_u32 s{S_TYPE}, 4
    s_cbranch_scc1 G2_START
    @save top""")

X = 128; ACC = [64, 96]; WF = 40; PK = 24; TMP = 12
S_XROW, S_XLDS, S_XCH, S_A2B, S_COL0, S_C1, S_C2, S_ST, S_XLD2 = 56, 57, 58, 59, 60, 64, 65, 66, 67
S_MASK, S_FLA, S_KVF, S_KVW = 68, 70, 72, 74

def g1_start(a):
    XV = 64; XA = 68; ST = 76
    a(f"""v_xor_b32 v5, v2, v4
    v_lshlrev_b32 v5, 4, v5
    v_lshl_add_u32 v{XV}, v1, 10, v5
    v_xor_b32 v{XV+1}, 64, v{XV}
    v_add_u32 v{XV+1}, 7168, v{XV+1}
    v_add_u32 v{XV+2}, 14336, v{XV}
    v_add_u32 v{XV+3}, 14336, v{XV+1}
    s_lshl2_add_u32 s{T0}, s{S_I}, s{S_WV}
    s_lshl_b32 s{S_XROW}, s{T0}, 15
    s_lshl_b32 s{S_XLDS}, s{S_WV}, 14
    s_lshl_b32 s{S_XCH}, s{S_ROT}, 7
    s_mov_b32 s{R_X+2}, {2048*1024}
    s_mov_b32 s{R_X+3}, 0x20000
    s_mov_b32 m0, s{S_XLDS}
    s_add_u32 s{T1}, s{S_XROW}, s{S_XCH}
    s_waitcnt lgkmcnt(0)
    s_mov_b64 s[{R_X}:{R_X+1}], s[{S_X}:{S_X+1}]""")
    def xdma(c):
        if c:
            a(f"""s_add_u32 s{S_XCH}, s{S_XCH}, 128
            s_and_b32 s{S_XCH}, s{S_XCH}, 1023
            s_add_u32 m0, s{S_XLDS if c < 4 else S_XLD2}, {(c&3)*4096}
            s_add_u32 s{T1}, s{S_XROW}, s{S_XCH}""")
        for q in range(4):
            a(f"buffer_load_dwordx4 v{XV+q}, s[{R_X}:{R_X+3}], s{T1} offen offset:{q*1024} lds ; @tag x{c}")
    xdma(0)
    stamp(a, 'g1_karg')
    xdma(1)
    a("""s_branch G1_CONT
    @save g1c""")
    g2_stub(a)
    a("""G1_CONT:
    @restore g1c""")
    if P.prio_g1: a(f"s_setprio {P.prio_g1}")
    B1 = {'q': 36, '1': 38, '2': 40, 'o': 42}
    for arr in sorted({x[0] for l in P.sm_g1.values() for x in l}): smem_base(a, arr, B1[arr])
    smem_loads(a, P.sm_g1.get('start', []), B1)
    a(f"""s_add_u32 s44, s{S_WS}, {EPOCH}
    s_addc_u32 s45, s{S_WS+1}, 0
    s_or_b32 s46, s2, s{S_WV}
    s_cbranch_scc1 G1_NOEP
    s_load_dword s{S_NONCE}, s[44:45], 0 glc
    G1_NOEP:""")
    decode(a)
    srd(a, R_WS, S_WS, WS_USED)
    a(f"""s_mov_b32 s{S_BUD}, {P.spin}
    s_add_u32 s{S_XLD2}, s{S_XLDS}, {RING+16384}
    s_mul_i32 s{S_A2B}, s{T0}, {TBS}
    s_lshr_b32 s{T1}, s{T0}, 1
    s_lshr_b32 s{T2}, s{S_IDX}, 1
    s_lshl2_add_u32 s{T1}, s{T1}, s{T2}
    s_lshl_b32 s{T1}, s{T1}, 7
    s_and_b32 s{T0}, s{T0}, 1
    s_and_b32 s{T2}, s{S_IDX}, 1
    s_lshl1_add_u32 s{T0}, s{T2}, s{T0}
    s_lshl2_add_u32 s{T0}, s{T0}, s{T1}
    s_add_u32 s{T0}, s{T0}, {FL_H}
    s_add_u32 s{S_FLA}, s{S_WS}, s{T0}
    s_addc_u32 s{S_FLA+1}, s{S_WS+1}, 0""")
    a(f"""v_and_b32 v6, 31, v0
    v_lshrrev_b32 v7, 5, v0
    v_bfe_u32 v8, v0, 1, 3
    v_lshlrev_b32 v9, 7, v6
    v_add_u32 v9, s{S_XLDS}, v9""")
    for t in range(4):
        a(f"""v_add_u32 v10, {2*t}, v7
        v_xor_b32 v10, v10, v8
        v_lshl_add_u32 v{XA+t}, v10, 4, v9
        v_add_u32 v{XA+4+t}, {RING+16384}, v{XA+t}""")
    a(f"""v_bfe_u32 v8, v0, 2, 2
    v_lshl_add_u32 v9, v7, 3, v8
    v_and_b32 v10, 1, v4
    v_and_b32 v11, 3, v0
    v_lshlrev_b32 v10, 5, v10
    v_lshl_add_u32 v10, v11, 3, v10
    v_lshl_add_u32 v6, v9, 6, v10
    v_add_u32 v6, {RING}, v6
    v_lshrrev_b32 v8, 1, v8
    v_lshlrev_b32 v8, 6, v8
    v_xor_b32 v10, v10, v8
    v_lshl_add_u32 v2, v9, 7, v10
    v_add_u32 v2, {RING}, v2
    v_xor_b32 v3, 64, v2
    v_add_u32 v4, 0x10000, v2
    v_add_u32 v5, 0x10000, v3
    v_lshlrev_b32 v1, 4, v0
    s_mov_b32 s{S_C1}, 0x3f803f80""")
    for e in range(4): a(f"v_mov_b32 v{ST+e}, 0")
    for c in range(2, P.xla): xdma(c)
    def stats(c):
        for d in range(16):
            r = X+16*c+d
            a(f"v_dot2_f32_bf16 v{ST+(d&1)}, v{r}, s{S_C1}, v{ST+(d&1)}")
            a(f"v_dot2_f32_bf16 v{ST+2+(d&1)}, v{r}, v{r}, v{ST+2+(d&1)}")
    for c in range(8):
        a(f"@wait_vm x{c}")
        if c == 0: stamp(a, 'g1_x0')
        for t in range(4):
            a(f"ds_read_b128 {vr(X+16*c+4*t,4)}, v{XA+t+(4 if c >= 4 else 0)} offset:{(c&3)*4096}")
        if c + P.xla < 8:
            xdma(c + P.xla)
            if c + P.xla == 7: a("s_barrier")
        if c == 1:
            a(f"""s_cmp_lg_u32 s46, 0
            s_cbranch_scc1 G1_NONONCE
            @off
            s_mov_b32 s{S_NONCE+1}, 1
            s_waitcnt lgkmcnt(0)
            s_mul_i32 s{S_NONCE}, s{S_NONCE}, 1664525
            s_add_u32 s{S_NONCE}, s{S_NONCE}, 1013904223
            s_atomic_swap_x2 s[{S_NONCE}:{S_NONCE+1}], s[{S_DBG}:{S_DBG+1}], 0
            s_atomic_swap s{S_NONCE}, s[44:45], 0
            @on
            G1_NONONCE:""")
        if c: stats(c - 1)
    a("@wait_lgkm xr")
    a("s_barrier")
    stats(7)
    stamp(a, 'g1_xdone')
    a(f"""v_add_f32 v10, v{ST}, v{ST+1}
    v_add_f32 v8, v{ST+2}, v{ST+3}
    v_mov_b32 v11, v10
    v_mov_b32 v9, v8
    s_cmp_eq_u32 s{S_TYPE}, 0
    s_mov_b32 s{T0}, {hx(LOG2E)}
    v_permlane32_swap_b32 v10, v11
    v_permlane32_swap_b32 v8, v9
    s_cselect_b32 s{T0}, s{T0}, {hx(-LOG2E)}
    v_add_f32 v10, v10, v11
    v_add_f32 v8, v8, v9
    v_mul_f32 v10, {hx(1/512)}, v10
    v_mul_f32 v8, {hx(1/512)}, v8
    v_fma_f32 v8, -v10, v10, v8
    v_max_f32 v8, 0, v8
    v_add_f32 v8, {hx(1e-5)}, v8
    v_rsq_f32 v8, v8
    s_mov_b32 s{S_C2}, 0xffff0000
    v_mul_f32 v8, s{T0}, v8
    v_mul_f32 v10, -v10, v8
    v_mov_b32 v9, v8
    v_mov_b32 v11, v10""")
    for ks in range(32):
        smem_loads(a, P.sm_g1.get(ks, []), B1)
        if ks == 15: a(nonce_load())
        for d in range(4):
            r = X+4*ks+d; t = TMP + 2*d
            a(f"v_lshlrev_b32 v{t}, 16, v{r}")
            a(f"v_and_b32 v{t+1}, s{S_C2}, v{r}")
        for d in range(4):
            t = TMP + 2*d
            a(f"v_pk_fma_f32 {vr(t,2)}, {vr(t,2)}, v[8:9], v[10:11]")
        for d in range(4):
            t = TMP + 2*d
            a(f"v_cvt_pk_bf16_f32 v{X+4*ks+d}, v{t}, v{t+1}")
    a(nonce_check())
    stamp(a, 'g1_ln')
    a(f"""s_cmp_eq_u32 s{S_TYPE}, 0
    s_cbranch_scc1 G1_A
    @save g1""")

def g1_main(a, units, fill, lastbar):
    slots = []; tile0 = 0
    for (half, wa, buf) in units:
        for ks in range(32):
            if half: slots.append((tile0 + ks//16, (ks % 16)*1024, 0, True, ACC[buf], ks, wa))
            else:
                for b in range(2): slots.append((tile0 + ks//8, (ks % 8)*2048, b, False, ACC[buf]+16*b, ks, wa))
        tile0 += 2 if half else 4
    def rd(n):
        tile, off, b, half, acc, ks, wa = slots[n]
        if n % 16 == 0 and tile <= lastbar:
            for it in fill.get(('bar', tile), []): a(it)
            stamp(a, f'g1_b{tile}')
            a("s_barrier")
        sl = tile % NRING
        f = WF + 4*(n % P.NWF)
        if half:
            assert sl < 4
            ad = 6; o = sl*16384 + off; o2 = o + 256
        else:
            ad = (2 if sl < 4 else 4) + b; o = (sl % 4)*16384 + off; o2 = o + 512
        a(f"ds_read_b64_tr_b16 {vr(f,2)}, v{ad} offset:{o}")
        a(f"ds_read_b64_tr_b16 {vr(f+2,2)}, v{ad} offset:{o2}")
    for n in range(P.LA): rd(n)
    for n, (tile, off, b, half, acc, ks, wa) in enumerate(slots):
        f = WF + 4*(n % P.NWF)
        A, B = (vr(f,4), vr(X+4*ks,4)) if wa else (vr(X+4*ks,4), vr(f,4))
        a(f"{MF} {vr(acc,16)}, {A}, {B}, {'0' if ks == 0 else vr(acc,16)}")
        if n + P.LA < len(slots): rd(n + P.LA)
        for it in fill.get(n, []): a(it)
        if n % 64 == 63 or n == len(slots) - 1: stamp(a, ['g1_u0','g1_u1','g1_u2','g1_7'][n//64])

def silu_ops(acc, nb, un, O=24):
    T = 12
    out = [f"s_add_u32 s{S_ST}, s{S_A2B}, s{S_COL0+un}"]
    pend = []; late = []
    for p in range(8*nb):
        r0, r1 = acc+2*p, acc+2*p+1
        t0, t1 = T + 2*(p & 1), T + 2*(p & 1) + 1
        out.append(f"v_exp_f32 v{t0}, v{r0}")
        out.extend(pend)
        out += [f"v_exp_f32 v{t1}, v{r1}", f"v_add_f32 v{t0}, 1.0, v{t0}", f"v_rcp_f32 v{t0}, v{t0}",
                f"v_add_f32 v{t1}, 1.0, v{t1}", f"v_rcp_f32 v{t1}, v{t1}", f"v_mul_f32 v{r0}, v{t0}, v{r0}"]
        fr = p//4; o = O + 4*fr
        pend = [f"v_mul_f32 v{r1}, v{t1}, v{r1}", f"v_cvt_pk_bf16_f32 v{o+(p&3)}, v{r0}, v{r1}"]
        if p % 4 == 3 and P.hstore is not None:
            (late if P.cluster else pend).append(
                f"buffer_store_dwordx4 {vr(o,4)}, v1, s[{R_WS}:{R_WS+3}], s{S_ST} offen offset:{fr*1024} {P.hstore}")
    out.extend(pend)
    if late: out.append("\n".join(late))
    return out

def g1_f(a):
    fill = {}
    spread(fill, [f"s_mul_i32 s{T0}, s{S_IDX}, 14\ns_and_b32 s{T1}, s{S_IDX}, 1",
                  f"s_lshl1_add_u32 s{T2}, s{T1}, s{T0}\ns_lshl_b32 s{S_COL0}, s{T2}, 10",
                  f"s_add_u32 s{S_COL0+1}, s{S_COL0}, 4096\ns_add_u32 s{S_COL0+2}, s{S_COL0}, 8192",
                  f"s_cmp_eq_u32 s{T1}, 0\ns_cselect_b32 s{T1}, 12, 0",
                  f"s_add_u32 s{T0}, s{T0}, s{T1}\ns_lshl_b32 s{S_COL0+3}, s{T0}, 10"], 20, 30)
    spread(fill, silu_ops(ACC[0], 2, 0), 66, P.hi0)
    spread(fill, silu_ops(ACC[1], 2, 1), 130, P.hi1)
    ops2 = silu_ops(ACC[0], 2, 2)
    h = len(ops2)*P.e2frac//8
    spread(fill, ops2[:h], 194, 224)
    fill.setdefault(min(P.hi0 - 1 + P.pub_delay, 223), []).append("@wait_vm st0\n" + flag_set(S_FLA, 0))
    fill.setdefault(min(P.hi1 - 1 + P.pub_delay, 223), []).append("@wait_vm st1\n" + flag_set(S_FLA, 16))
    g1_main(a, [(False, True, 0), (False, True, 1), (False, True, 0), (True, True, 1)], fill, P.lastF)
    if P.prio_tail != P.prio_g1: a(f"s_setprio {P.prio_tail}")
    for op in ops2[h:]: a(op)
    for op in silu_ops(ACC[1], 1, 3, O=WF): a(op)
    stamp(a, 'g1_8')
    a("@wait_vm st2"); a(flag_set(S_FLA, 32))
    a("@wait_vm st3"); a(flag_set(S_FLA, 48))
    stamp(a, 'g1_9')
    stamp_out(a, 0)
    a("s_endpgm")

def phi_ops(acc, zacc):
    T = 12; S_C0, S_LN2 = S_COL0, S_COL0+1
    out = []; pend = []
    for p in range(16):
        r0, r1 = acc+2*p, acc+2*p+1
        t0, t1 = T + 2*(p & 1), T + 2*(p & 1) + 1
        out += [f"v_exp_f32 v{t0}, v{r0} clamp", f"v_max_f32 v{r0}, s{S_C0}, v{r0}"]
        out.extend(pend)
        out += [f"v_exp_f32 v{t1}, v{r1} clamp", f"v_max_f32 v{r1}, s{S_C0}, v{r1}",
                f"v_fmac_f32 v{t0}, s{S_LN2}, v{r0}", f"v_fmac_f32 v{t1}, s{S_LN2}, v{r1}"]
        pend = [f"v_cvt_pk_bf16_f32 v{PK+p}, v{t0}, v{t1}"]
        if zacc is not None and p >= 1:
            q = p - 1; z = zacc + q//8
            pend.append(f"v_dot2_f32_bf16 v{z}, v{PK+q}, s{S_C1}, {'0' if q % 8 == 0 else f'v{z}'}")
    out.extend(pend)
    if zacc is not None: out.append(f"v_dot2_f32_bf16 v{zacc+1}, v{PK+15}, s{S_C1}, v{zacc+1}")
    return out

def g1_a(a):
    S_C0, S_LN2, S_KVG, S_KVS = S_COL0, S_COL0+1, S_COL0+2, S_COL0+3
    MASK = f"s[{S_MASK}:{S_MASK+1}]"
    a("G1_A:")
    a("@restore g1")
    fill = {}
    def put(g, ops): fill.setdefault(g, []).extend(ops)
    spread(fill, [f"s_mov_b32 s{S_C0}, {hx(1e-6*LOG2E)}\ns_mov_b32 s{S_LN2}, {hx(LN2)}",
           f"s_mul_i32 s{S_KVG}, s{S_IDX}, {16*KV_SLOT}\ns_add_u32 s{S_KVG}, s{S_KVG}, {KV_OFF}",
           f"s_lshl2_add_u32 s{T0}, s{S_IDX}, s{S_WV}\ns_lshl_b32 s{T0}, s{T0}, 7",
           f"s_add_u32 s{T0}, s{T0}, {FL_KV}\ns_lshl2_add_u32 s{T1}, s{S_I}, s{T0}",
           f"s_add_u32 s{S_KVF}, s{S_WS}, s{T0}\ns_addc_u32 s{S_KVF+1}, s{S_WS+1}, 0",
           f"s_add_u32 s{S_KVW}, s{S_WS}, s{T1}\ns_addc_u32 s{S_KVW+1}, s{S_WS+1}, 0",
           f"s_mov_b32 s{S_MASK}, 0x0000ffff\ns_mov_b32 s{S_MASK+1}, 0x0000ffff",
           "v_bfe_u32 v8, v0, 4, 1", "v_lshlrev_b32 v8, 10, v8", "v_and_b32 v9, 15, v0", "v_lshl_add_u32 v8, v9, 4, v8",
           "v_lshl_add_u32 v8, v7, 8, v8", f"s_lshl_b32 s{T0}, s{S_WV}, 12\ns_add_u32 s{T0}, s{T0}, {MISC}\nv_add_u32 v8, s{T0}, v8",
           "v_lshlrev_b32 v11, 2, v0", f"v_add_u32 v11, {MISC}, v11", f"s_lshl_b32 s{T0}, s{S_WV}, 8\nv_add_u32 v9, s{T0}, v11",
           f"s_lshl_b32 s{T0}, s{S_WV}, 10\ns_add_u32 s{T1}, s{T0}, {MISC}\nv_add_u32 v10, s{T1}, v1",
           f"s_mul_i32 s{T1}, s{S_I}, {KV_SLOT}\ns_add_u32 s{S_ST}, s{T1}, s{S_KVG}",
           f"s_add_u32 s{S_KVS}, s{T0}, s{S_ST}"], 14, 58)
    Z = 16
    ops = phi_ops(ACC[0], Z)
    ops += [f"v_permlane32_swap_b32 v{Z}, v{Z+1}", f"v_add_f32 v{Z}, v{Z}, v{Z+1}", f"ds_write_b32 v9, v{Z}"]
    g7 = 16*7 - P.LA
    spread(fill, ops, 66, g7)
    fill[('bar', 7)] = ["@wait_lgkm zw"]
    put(g7, [f"ds_read_b32 v{12+p}, v11 offset:{p*256}" for p in range(4)])
    spread(fill, ["v_add_f32 v12, v12, v13", "v_add_f32 v14, v14, v15", f"v_subrev_u32 v11, {MISC-4096}, v11", "v_add_f32 v22, v12, v14"], g7 + 4, g7 + 8)
    V = ACC[1]; D = ACC[1] + 16; T = 12
    cv = [f"v_cvt_pk_bf16_f32 v{V+e}, v{V+2*e}, v{V+2*e+1}" for e in range(16)]
    def kvm(b): return [f"{MF} {vr(D,16)}, {vr(PK+8*b,4)}, {vr(V+8*b,4)}, 0", f"{MF} {vr(D,16)}, {vr(PK+8*b+4,4)}, {vr(V+8*b+4,4)}, {vr(D,16)}"]
    def sel(b):
        return ([f"v_cndmask_b32 v{T+e}, v{D+8+e}, v{D+e}, {MASK}" for e in range(8)],
                [f"ds_write_b128 v8, {vr(T+4*q,4)} offset:{b*2048+q*512}" for q in range(2)])
    g = 129; g9 = 16*9 - P.LA
    put(g, cv[:8]); put(g+1, cv[8:]); put(g+2, kvm(0))
    o, w = sel(0); put(g+5, o + kvm(1) + w)
    o, w = sel(1); put(min(g+8, g9-1), o + w)
    fill[('bar', 9)] = ["@wait_lgkm kvw"]
    g = g9
    put(g, [f"ds_read_b128 {vr(V+4*p,4)}, v10 offset:{p*4096}" for p in range(4)])
    ops = [f"v_add_f32 v{V+e}, v{V+e}, v{V+4+e}" for e in range(4)]
    ops += [f"v_add_f32 v{V+8+e}, v{V+8+e}, v{V+12+e}" for e in range(4)]
    ops += [f"v_add_f32 v{V+e}, v{V+e}, v{V+8+e}" for e in range(4)]
    ops += [f"buffer_store_dwordx4 {vr(V,4)}, v1, s[{R_WS}:{R_WS+3}], s{S_KVS} offen sc1",
            f"buffer_store_dword v22, v11, s[{R_WS}:{R_WS+3}], s{S_ST} offen sc1"]
    put(g+3, ops)
    put(g+5, [f"s_lshl2_add_u32 s{T0}, s{S_WV}, {AFL}\nv_mov_b32 v18, s{T0}", "v_mov_b32 v23, 0", "ds_write_b32 v18, v23"])
    put(g+6, ["v_and_b32 v19, 3, v0", "v_lshlrev_b32 v19, 2, v19", f"v_add_u32 v19, {AFL}, v19"])
    fill[('bar', 10)] = ["@wait_lgkm fz"]
    assert P.lastA >= 10
    spread(fill, ["v_and_b32 v21, 15, v0", "v_bfe_u32 v8, v0, 4, 1", f"v_mul_u32_u24 v9, {KV_SLOT}, v8",
           "v_lshl_add_u32 v9, v21, 4, v9", "v_lshl_add_u32 v9, v7, 8, v9", f"v_mul_u32_u24 v11, {KV_SLOT}, v21",
           "v_lshl_add_u32 v11, v8, 5, v11", "v_lshl_add_u32 v11, v7, 4, v11", f"v_subrev_u32 v8, {MISC-AFR}, v10", f"v_add_u32 v10, {AFR}, v1",
           "v_mov_b32 v23, 1",
           f"s_lshl2_add_u32 s{T0}, s{S_IDX}, 112\ns_lshl_b32 s{T0}, s{T0}, 10\ns_add_u32 s{S_ST}, s{T0}, s{S_A2B}",
           f"s_lshl_b32 s{T0}, s{S_WV}, 6\ns_add_u32 s{T0}, s{T0}, s{S_KVG}\ns_add_u32 s{S_KVS}, s{T0}, 4096",
           f"s_lshl_b32 s{T0}, s{S_WV}, 10\ns_add_u32 s{S_KVG}, s{T0}, s{S_KVG}"], g + 7, g + 22)
    put(min(g + 4 + P.kv_delay, 191), ["@wait_vm kvs\n" + flag_set(S_KVW, 0)])
    if P.kvpoll[0] < 0: put(191 + P.kvpoll[0], [poll_load(4, 16, S_KVF, 0)])
    g1_main(a, [(False, False, 0), (False, False, 1), (False, True, 0)], fill, P.lastA)
    if P.prio_tail != P.prio_g1: a(f"s_setprio {P.prio_tail}")
    ph = phi_ops(ACC[0], None)
    n1 = len(ph)*max(P.kvpoll[0], 0)//8; n2 = len(ph)*P.kvpoll[1]//8
    for op in ph[:n1]: a(op)
    if P.kvpoll[0] >= 0: a(poll_load(4, 16, S_KVF, 0))
    for op in ph[n1:n2]: a(op)
    stamp(a, 'g1_7')
    a(poll_check(4, 16, S_KVF, 0))
    stamp(a, 'g1_8')
    ZR = X + 64
    a(f"buffer_load_dwordx4 {vr(ZR,4)}, v11, s[{R_WS}:{R_WS+3}], s{S_KVS} offen sc1")
    for m in range(8):
        for q in range(2):
            a(f"buffer_load_dwordx4 {vr(X+8*m+4*q,4)}, v9, s[{R_WS}:{R_WS+3}], s{S_KVG} offen offset:{q*512} sc1")
        if m < 7: a(f"s_add_u32 s{S_KVG}, s{S_KVG}, {2*KV_SLOT}")
    for op in ph[n2:]: a(op)
    for sh in (1, 2, 4, 8):
        for e in range(4): a(f"v_add_f32 v{ZR+e}, v{ZR+e}, v{ZR+e} row_ror:{sh} row_mask:0xf bank_mask:0xf")
    for e in range(4): a(f"v_mov_b32 v{ZR+4+e}, v{ZR+e}")
    for e in range(4): a(f"v_permlane16_swap_b32 v{ZR+e}, v{ZR+4+e}")
    for e in range(4): a(f"v_cvt_pk_bf16_f32 v{ZR+e}, v{ZR+2*e}, v{ZR+2*e+1}")
    for m in range(1, 8):
        for e in range(8): a(f"v_add_f32 v{X+e}, v{X+e}, v{X+8*m+e}")
    for e in range(4): a(f"v_permlane16_swap_b32 v{X+e}, v{X+4+e}")
    for e in range(4): a(f"v_add_f32 v{X+e}, v{X+e}, v{X+4+e}")
    for e in range(2): a(f"v_cvt_pk_bf16_f32 v{X+e}, v{X+2*e}, v{X+2*e+1}")
    for e in range(2): a(f"v_mov_b32 v{X+2+e}, v{X+e}")
    for e in range(2): a(f"v_permlane16_swap_b32 v{X+e}, v{X+2+e}")
    for e in range(4): a(f"v_cndmask_b32 v{ZR+e}, v{ZR+e}, v{X+e}, {MASK}")
    a(f"ds_write_b128 v8, {vr(ZR,4)}")
    a("ds_write_b32 v18, v23")
    stamp(a, 'g1_9')
    a(lds_wait(21, 19, 1))
    for hd in range(4): a(f"ds_read_b128 {vr(WF+4*hd,4)}, v10 offset:{hd*1024}")
    for hd in range(4): a(f"{MF} {vr(64+16*hd,16)}, {vr(WF+4*hd,4)}, {vr(PK+4*hd,4)}, 0")
    for hd in range(4):
        d = 64+16*hd
        a(f"""v_add_f32 v16, {hx(1e-6)}, v{d+8}
        v_rcp_f32 v16, v16""")
        for e in range(8): a(f"v_mul_f32 v{d+e}, -v{d+e}, v16")
        for e in range(4): a(f"v_cvt_pk_bf16_f32 v{d+e}, v{d+2*e}, v{d+2*e+1}")
        a(f"buffer_store_dwordx4 {vr(d,4)}, v1, s[{R_WS}:{R_WS+3}], s{S_ST} offen offset:{hd*1024} sc1")
    stamp(a, 'g1_10')
    a("s_waitcnt vmcnt(0)")
    a(flag_set(S_FLA, 64))
    stamp(a, 'g1_11')
    stamp_out(a, 0)
    a("s_endpgm")

A2R = 8; B2R = 48; AC2 = 192
WV_F = AC2; WV_H = AC2 + 4; DUM = AC2 + 8
S_TH, S_THH, S_TO = 56, 64, 68
S_RB = 4; S_CB = 10; S_LW = 14; S_LX = 15; S_FH = 16
S_POLL = R_W

B2S = {'q': 52, '1': 98, '2': 52, 'o': 98}
def g2_stub(a):
    a("G2_START:")
    a("@restore top")
    a("s_waitcnt lgkmcnt(0)")
    if P.sm_g2[0]:
        for arr in sorted({x[0] for x in P.sm_g2[0]}): smem_base(a, arr, B2S[arr])
        smem_loads(a, P.sm_g2[0], B2S)
    a("s_branch G2_CONT")

def g2_setup(a):
    a("G2_CONT:")
    a("@restore top")
    for arr in sorted({x[0] for l in P.sm_g2[1:] for x in l} - {x[0] for x in P.sm_g2[0]}): smem_base(a, arr, B2S[arr])
    decode(a)
    a(f"""s_cmp_eq_u32 s{S_TYPE}, 0
    s_movk_i32 s{T0}, 3072
    s_cselect_b32 s{S_STRIDE}, s{T0}, 3584
    v_and_b32 v4, 1, v4
    v_lshlrev_b32 v5, 2, v4
    v_xor_b32 v5, v5, v2
    v_lshlrev_b32 v5, 4, v5
    v_mad_u32_u24 v{WV_F}, v1, s{S_STRIDE}, v5
    s_lshl_b32 s{T0}, s{S_STRIDE}, 3
    s_sub_u32 s{T0}, s{T0}, 1024
    v_add_u32 v{WV_F+1}, s{T0}, v{WV_F}
    v_add_u32 v{WV_F+2}, s{T0}, v{WV_F+1}
    v_add_u32 v{WV_F+3}, s{T0}, v{WV_F+2}
    v_lshrrev_b32 v8, 2, v0
    v_and_b32 v9, 3, v0
    v_lshlrev_b32 v10, 4, v9
    v_mad_u32_u24 v{WV_H}, v8, s{S_STRIDE}, v10
    s_lshl_b32 s{T0}, s{S_STRIDE}, 4
    s_sub_u32 s{T0}, s{T0}, 1024
    v_add_u32 v{WV_H+1}, s{T0}, v{WV_H}
    v_add_u32 v{WV_H+2}, s{T0}, v{WV_H+1}
    v_add_u32 v{WV_H+3}, s{T0}, v{WV_H+2}
    s_mov_b32 s{S_BUD}, {P.spin}""")
    if P.prio_g2: a(f"s_setprio {P.prio_g2}")
    a(f"""s_cmp_eq_u32 s{S_TYPE}, 0
    s_cselect_b64 s[{R_W}:{R_W+1}], s[{S_WQKV}:{S_WQKV+1}], s[{S_W1}:{S_W1+1}]
    s_lshl_b32 s{R_W+2}, s{S_STRIDE}, 9
    s_mov_b32 s{R_W+3}, 0x20000""")
    srd(a, R_X, S_X, 2048*1024)
    srd(a, R_WS, S_WS, WS_USED)
    srd(a, R_W2, S_W2, 1792*1024)
    srd(a, R_WO, S_WO, 512*1024)
    srd(a, R_OUT, S_OUT, 2048*1024)
    if P.dmode == 1:
        a(f"""s_lshl2_add_u32 s{T0}, s2, s{S_WV}
        s_mul_i32 s{T1}, s{T0}, 14
        v_min_u32 v11, 13, v0
        v_add_lshl_u32 v11, v11, s{T1}, 7
        v_mov_b32 v{DUM+1}, s{S_W2+1}
        v_add_co_u32 v{DUM}, vcc, s{S_W2}, v11
        v_addc_co_u32 v{DUM+1}, vcc, 0, v{DUM+1}, vcc
        s_lshl_b32 s{T1}, s{T0}, 2
        v_add_lshl_u32 v11, v9, s{T1}, 7
        v_mov_b32 v13, s{S_WO+1}
        v_add_co_u32 v12, vcc, s{S_WO}, v11
        v_addc_co_u32 v13, vcc, 0, v13, vcc
        v_cmp_gt_u32 vcc, 16, v0
        v_cndmask_b32 v{DUM}, v12, v{DUM}, vcc
        v_cndmask_b32 v{DUM+1}, v13, v{DUM+1}, vcc""")
    elif P.dmode == 0:
        a(f"""s_cmp_eq_u32 s{S_WV}, 1
        s_cselect_b64 s[56:57], s[{S_W1}:{S_W1+1}], s[{S_WQKV}:{S_WQKV+1}]
        s_cselect_b32 s{T0}, 56, 48
        s_cmp_eq_u32 s{S_WV}, 2
        s_cselect_b64 s[56:57], s[{S_W2}:{S_W2+1}], s[56:57]
        s_cselect_b32 s{T0}, 56, s{T0}
        s_cmp_eq_u32 s{S_WV}, 3
        s_cselect_b64 s[56:57], s[{S_WO}:{S_WO+1}], s[56:57]
        s_cselect_b32 s{T0}, 16, s{T0}
        s_mul_i32 s{T1}, s{T0}, s2
        s_sub_u32 s{T0}, s{T0}, 1
        s_cmp_eq_u32 s{S_WV}, 0
        s_cselect_b32 s{T2}, {P.dskip[0]}, 0
        s_cmp_eq_u32 s{S_WV}, 1
        s_cselect_b32 s{T2}, {P.dskip[1]}, s{T2}
        v_min_u32 v11, s{T0}, v0
        v_max_u32 v11, s{T2}, v11
        v_add_lshl_u32 v11, v11, s{T1}, 7
        v_mov_b32 v{DUM+1}, s57
        v_add_co_u32 v{DUM}, vcc, s56, v11
        v_addc_co_u32 v{DUM+1}, vcc, 0, v{DUM+1}, vcc""")
    smem_loads(a, P.sm_g2[1], B2S)
    a(f"""s_lshr_b32 s{T0}, s{S_WV}, 1
    s_add_u32 s{T0}, s{T0}, s{S_ROT}
    s_and_b32 s{T1}, s{S_WV}, 1
    s_lshl1_add_u32 s{T2}, s{T0}, s{T1}""")
    for tau in range(4):
        a(f"""s_add_u32 s{T0}, s{T2}, {4*tau}
        s_and_b32 s{T0}, s{T0}, 15
        s_lshl_b32 s{T0}, s{T0}, 5
        s_mul_i32 s{S_RB+tau}, s{T0}, s{S_STRIDE}""")
    for tau in range(2):
        a(f"""s_add_u32 s{T0}, s{S_ROT}, s{S_WV}
        s_add_u32 s{T0}, s{T0}, {4*tau}
        s_and_b32 s{T0}, s{T0}, 7
        s_lshl_b32 s{T0}, s{T0}, 6
        s_mul_i32 s{S_RB+4+tau}, s{T0}, s{S_STRIDE}""")
    a(f"""s_lshl_b32 s58, s{S_IDX}, 7
    s_mul_i32 s59, s{S_IDX}, 448
    s_and_b32 s60, s{S_IDX}, 1
    s_lshl_b32 s{T0}, s60, 6
    s_add_u32 s61, s{T0}, s59
    s_add_u32 s62, s58, 1024
    s_add_u32 s{T0}, s58, 2048
    s_add_u32 s{T1}, s61, 128
    s_add_u32 s{T2}, s61, 256
    s_cmp_eq_u32 s{S_TYPE}, 0
    s_cselect_b32 s{S_CB}, s62, s61
    s_cselect_b32 s{S_CB+1}, s{T0}, s{T1}
    s_cselect_b32 s{S_CB+2}, s58, s{T2}
    s_cmp_eq_u32 s60, 0
    s_cselect_b32 s{T0}, 384, 0
    s_add_u32 s{S_CB+3}, s59, s{T0}
    s_lshl_b32 s{S_LW}, s{S_WV}, 12
    s_add_u32 s{S_LW}, s{S_LW}, {RING}
    s_lshl_b32 s{S_LX}, s{S_WV}, 14""")
    a(f"""s_lshr_b32 s{T0}, s{S_IDX}, 2
    s_lshl1_add_u32 s{T0}, s{S_I}, s{T0}
    s_lshr_b32 s{T2}, s{S_T}, 2
    s_xor_b32 s{T2}, s{T2}, {P.ntx}
    s_lshl_b32 s{T2}, s{T2}, 7
    v_lshl_add_u32 v1, v1, 10, v5
    v_add_u32 v1, s{T2}, v1
    v_add_u32 v2, 7168, v1
    s_lshl2_add_u32 s{T1}, s{T0}, s{S_WV}
    s_lshl_b32 s{T1}, s{T1}, 7
    s_add_u32 s{T1}, s{T1}, {FL_H}
    s_add_u32 s{S_FH}, s{S_WS}, s{T1}
    s_addc_u32 s{S_FH+1}, s{S_WS+1}, 0
    s_lshr_b32 s{T1}, s{S_WV}, 1
    s_lshl1_add_u32 s{T0}, s{T0}, s{T1}
    s_lshl_b32 s{S_STRIDE}, s{T0}, 15
    s_add_u32 s{S_STRIDE}, s{S_STRIDE}, s{T2}
    s_and_b32 s{T2}, s{S_WV}, 1
    s_lshl_b32 s{T2}, s{T2}, 6
    s_add_u32 s{S_STRIDE}, s{S_STRIDE}, s{T2}
    s_mul_i32 s{T1}, s{T0}, {TBS}
    v_lshlrev_b32 v6, 4, v0
    v_add_u32 v5, s{T1}, v6
    s_xor_b32 s{T0}, s{T0}, 1
    s_mul_i32 s{T1}, s{T0}, {TBS}
    v_add_u32 v6, s{T1}, v6
    v_lshrrev_b32 v10, 5, v0
    v_and_b32 v8, 3, v8
    v_lshl_add_u32 v10, v10, 2, v8
    v_lshlrev_b32 v4, 5, v4
    v_lshl_add_u32 v4, v9, 3, v4
    v_lshrrev_b32 v8, 1, v8
    v_lshlrev_b32 v8, 6, v8
    v_xor_b32 v4, v4, v8
    v_lshl_add_u32 v3, v10, 7, v4
    v_xor_b32 v3, s{T2}, v3
    s_add_u32 s{T0}, s{S_LW}, {MISC-RING}
    v_add_u32 v0, s{T0}, v3
    v_xor_b32 v7, 64, v0
    v_add_u32 v3, s{S_LX}, v3
    v_xor_b32 v4, 64, v3""")
    smem_loads(a, P.sm_g2[2], B2S)
    g2_tables(a)
    smem_loads(a, P.sm_g2[3], B2S)
    stamp(a, 'g2_setup')
    a("s_barrier")

def g2_tables(a):
    a(f"""s_lshr_b32 s{T2}, s{S_ROT}, 1
    s_mul_i32 s{S_I}, s{S_WV}, 28
    s_lshl_b32 s{S_IDX}, s{S_WV}, 3""")
    for j in range(8):
        a(f"""s_add_u32 s{T0}, s{S_ROT}, {j>>2}
        s_and_b32 s{T0}, s{T0}, 1
        s_add_u32 s{T1}, s{T2}, {j}
        s_and_b32 s{T1}, s{T1}, 3
        s_lshl4_add_u32 s{S_TH+j}, s{T0}, s{T1}
        s_add_u32 s{S_TH+j}, s{S_TH+j}, s{S_I}
        s_lshl_b32 s{S_TH+j}, s{S_TH+j}, 10
        s_lshl2_add_u32 s{S_TO+j}, s{T0}, s{T1}
        s_add_u32 s{S_TO+j}, s{S_TO+j}, s{S_IDX}
        s_lshl_b32 s{S_TO+j}, s{S_TO+j}, 10""")
    for j in range(4):
        a(f"""s_add_u32 s{T0}, s{T2}, {j}
        s_and_b32 s{T0}, s{T0}, 3
        s_add_u32 s{T0}, s{T0}, s{S_I}
        s_add_u32 s{T0}, s{T0}, 12
        s_lshl_b32 s{S_THH+j}, s{T0}, 10""")

def step_info(s):
    if s < 24: return (S_TH + s % 8, (s//8)*4096, (s//8)*65536, R_W2)
    if s < 28: return (S_THH + s - 24, 0, 0, R_W2)
    return (S_TO + s - 28, 112*1024, 0, R_WO)

def g2_body(a, typ):
    NT = 14 if typ == 'F' else 12
    last = P.lastF if typ == 'F' else P.lastA
    SRES = S_STRIDE
    regsteps = [0, 1, 2] + list(range(11, 26))
    def breg(s): return B2R + 8*regsteps.index(s)
    order = P.border or (regsteps + list(range(3, 11)) + [34, 35])
    xo = [s for s in order if s < 34]
    assert sorted(xo[:18]) == regsteps and sorted(order) == list(range(26)) + [34, 35]
    slot = {s: k % 8 for k, s in enumerate(xo)}
    for s in range(26, 34): slot[s] = slot[s - 23]
    slot[34] = 8; slot[35] = 9
    nbar = [0]; nvm = [0]; defer = []
    lastrd = {}; owner = {}
    def flush(pred):
        idx = [k for k, d in enumerate(defer) if pred(d)]
        if idx:
            for d in defer[:idx[-1]+1]: b2rd(d[1], breg(d[1]))
            del defer[:idx[-1]+1]
    def vm(text, thr=True):
        if thr:
            flush(lambda d: d[0] <= nvm[0])
            a(f"@throttle {P.maxout}")
        a(text); nvm[0] += 1
    def wtile(t):
        half = t >= 12
        un, tau = (3, t - 12) if half else (t//4, t % 4)
        assert t < NRING or nbar[0] > t - 3, (t, nbar)
        stamp(a, f'g2_w{t}')
        a(f"""s_add_u32 m0, s{S_LW}, {(t % NRING)*16384}
        s_add_u32 s{T1}, s{S_CB+un}, s{S_RB+(4 if half else 0)+tau}""")
        for q in range(4):
            vm(f"buffer_load_dwordx4 v{(WV_H if half else WV_F)+q}, s[{R_W}:{R_W+3}], s{T1} offen offset:{q*1024} lds ; @tag w{t}")
    def b2dma(s, thr=True):
        sl = slot[s]
        if sl in owner: flush(lambda d: d[1] == owner[sl])
        if sl in lastrd: a(f"@wait_lgkm {lastrd[sl]}")
        owner[sl] = s
        tb, _, c2, R = step_info(s)
        if sl >= 8:
            assert typ == 'F' or nbar[0] > 10
            a(f"s_add_u32 m0, s{S_LW}, {MISC - RING + (sl-8)*2048}")
        else: a(f"s_add_u32 m0, s{S_LX}, {sl*2048}")
        a(f"s_lshl4_add_u32 s{T1}, s{tb}, {c2}")
        for q in range(2):
            if P.nob2 and thr: continue
            vm(f"buffer_load_dwordx4 v{1+q}, s[{R}:{R+3}], s{T1} offen offset:{q*1024} lds ; @tag b{s}", thr)
        if s in regsteps: defer.append((nvm[0] + P.maxout, s))
    def b2rd(s, dst):
        sl = slot[s]; o = (sl % 8)*2048
        a(f"@wait_vm b{s}")
        for be in range(2):
            ad = (3, 4)[be] if sl < 8 else (0, 7)[be]
            a(f"ds_read_b64_tr_b16 {vr(dst+4*be,2)}, v{ad} offset:{o} ; @tag r{s}")
            a(f"ds_read_b64_tr_b16 {vr(dst+4*be+2,2)}, v{ad} offset:{o+1024} ; @tag r{s}")
        lastrd[sl] = f"r{s}"
    prog = (P.progF if typ == 'F' else P.progA).replace(' ', '')
    assert prog.count('W') == NT and prog.count('B') == 28 and prog.count('|') == 1 and prog.count('P') == 1 \
        and prog.count('.') == last + 1 and prog.index('P') > prog.rindex('W'), prog
    nw = nb = 0; bar = False
    for c in prog:
        if c == 'W':
            assert bar or nw == 0
            wtile(nw); nw += 1
        elif c == 'B':
            assert bar
            b2dma(order[nb]); nb += 1
        elif c == 'D':
            vm(f"global_load_dword v{DUM+2}, {vr(DUM,2)}, off")
        elif c == '|':
            a("s_barrier"); bar = True
            a(nonce_load())
        elif c == '.':
            k = nbar[0]
            need = k if k < last else NT - 1
            assert nw > need
            a(f"@wait_vm w{need}")
            if k == 0: a(nonce_check())
            stamp(a, f'g2_e{k}')
            a("s_barrier")
            stamp(a, f'g2_t{k}')
            nbar[0] += 1
        elif c == 'P': a(poll_load(S_POLL, 4, S_FH, 0))
        else: raise ValueError(c)
    flush(lambda d: True)
    stamp(a, 'g2_p1end')
    if P.prio_g2b != P.prio_g2: a(f"s_setprio {P.prio_g2b}")
    stage = {0: 0, 8: 1, 16: 2, 24: 3, 28: 4}
    iss = {}; lo = -1
    for s in range(36):
        lo = max(lo, P.hold.get(s, -1)); iss[s] = max(s - P.RD, lo, -1)
    pollat = {}
    for (s, k), prev in zip(list(stage.items())[1:], stage): pollat[max(iss[s] - P.pa, iss[prev])] = k
    def a2ld(s):
        if s in stage:
            stamp(a, f'g2_pre{s}')
            a(poll_check(S_POLL, 4, S_FH, 16*stage[s]))
            stamp(a, f'g2_c{s}')
        tb, c1, _, _ = step_info(s)
        so = tb
        if c1:
            a(f"s_add_u32 s{T2}, s{tb}, {c1}"); so = T2
        for th in range(2):
            if s < P.thr2_until: a(f"@throttle {P.thr2}")
            a(f"buffer_load_dwordx4 {vr(A2R+8*(s%P.RD)+4*th,4)}, v{5+th}, s[{R_WS}:{R_WS+3}], s{so} offen sc1")
    def after(t):
        for s in range(36):
            if iss[s] == t: a2ld(s)
        if t in pollat: a(poll_load(S_POLL, 4, S_FH, 16*pollat[t]))
    after(-1)
    XA = breg(11); XR = breg(12)
    for s in range(36):
        stamp(a, f'g2_s{s}')
        bf = breg(s) if s in regsteps else B2R + 8*(s % 3)
        a(f"@need {vr(bf,8)}")
        for th in range(2):
            for be in range(2):
                acc = AC2 + 16*(2*th+be)
                a(f"{MF} {vr(acc,16)}, {vr(bf+4*be,4)}, {vr(A2R+8*(s%P.RD)+4*th,4)}, {'0' if s == 0 else vr(acc,16)}")
                if th == 0 and be == 0 and s + 2 < 36 and s + 2 not in regsteps: b2rd(s + 2, B2R + 8*((s+2) % 3))
        if 3 <= s < 11: b2dma(s + 23, thr=False)
        after(s)
        if s == 14:
            a(f"""v_mbcnt_lo_u32_b32 v{XA+1}, -1, 0
            v_mbcnt_hi_u32_b32 v{XA+1}, -1, v{XA+1}
            v_and_b32 v{XA}, 31, v{XA+1}
            v_lshlrev_b32 v{XA}, 10, v{XA}
            v_lshrrev_b32 v{XA+2}, 5, v{XA+1}
            v_lshl_add_u32 v{XA}, v{XA+2}, 4, v{XA}
            v_lshlrev_b32 v{XA+1}, 4, v{XA+1}
            v_add_u32 v{XA+2}, s{S_LX}, v{XA+1}""")
        if s == 31:
            a(f"""buffer_load_dwordx4 {vr(XR,4)}, v{XA}, s[{R_X}:{R_X+3}], s{SRES} offen
            buffer_load_dwordx4 {vr(XR+4,4)}, v{XA}, s[{R_X}:{R_X+3}], s{SRES} offen offset:32""")
    stamp(a, 'g2_mend')
    for tau in range(1, 4):
        for q in range(4): a(f"ds_write_b128 v{XA+2}, {vr(AC2+16*tau+4*q,4)} offset:{(tau-1)*4096+q*1024}")
    for tau in range(1, 4):
        a(f"""s_xor_b32 s{T0}, s{S_WV}, {tau}
        s_lshl_b32 s{T0}, s{T0}, 14
        v_add_u32 v{8+tau}, s{T0}, v{XA+1}""")
    a(f"""s_mov_b32 s{T0}, {hx(-LN2)}
    s_mov_b32 s{T1}, 0xffff0000""")
    for p in range(2):
        a(f"v_permlane32_swap_b32 v{XR+4*p}, v{XR+4*p+2}")
        a(f"v_permlane32_swap_b32 v{XR+4*p+1}, v{XR+4*p+3}")
    UU = 16
    for d in range(8):
        a(f"""v_lshlrev_b32 v{UU+2*d}, 16, v{XR+d}
        v_and_b32 v{UU+2*d+1}, s{T1}, v{XR+d}""")
    for e in range(16): a(f"v_fmac_f32 v{UU+e}, s{T0}, v{AC2+e}")
    a("s_waitcnt lgkmcnt(0)")
    stamp(a, 'g2_tb')
    a("s_barrier")
    stamp(a, 'g2_ta')
    for q in range(4):
        for tau in range(1, 4): a(f"ds_read_b128 {vr(AC2+16*tau+4*q,4)}, v{8+tau} offset:{(tau-1)*4096+q*1024}")
    for p in range(2):
        for q in (2*p, 2*p+1):
            for tau in range(1, 4):
                for e in range(4): a(f"v_fmac_f32 v{UU+4*q+e}, s{T0}, v{AC2+16*tau+4*q+e}")
        for d in range(4): a(f"v_cvt_pk_bf16_f32 v{XR+4*p+d}, v{UU+8*p+2*d}, v{UU+8*p+2*d+1}")
        a(f"v_permlane32_swap_b32 v{XR+4*p}, v{XR+4*p+2}")
        a(f"v_permlane32_swap_b32 v{XR+4*p+1}, v{XR+4*p+3}")
        a(f"buffer_store_dwordx4 {vr(XR+4*p,4)}, v{XA}, s[{R_OUT}:{R_OUT+3}], s{SRES} offen offset:{32*p} {P.oflag}")
    stamp(a, 'g2_end')
    stamp_out(a, 1)
    a("s_endpgm")

def kernel():
    U.n = 0
    a = Asm()
    prologue(a)
    g1_start(a)
    g1_f(a)
    g1_a(a)
    g2_setup(a)
    a(f"""s_cmp_eq_u32 s{S_TYPE}, 0
    s_cbranch_scc1 G2_A
    @save g2""")
    g2_body(a, 'F')
    a("G2_A:")
    a("@restore g2")
    g2_body(a, 'A')
    a("K_END:")
    a("s_endpgm")
    return a.finish()

def build():
    kn = NAME + "_kernel"
    s = HEADER
    s += "; @launch grid=(256,1,1) block=(512,1,1) lds=163840\n"
    s += '.amdgcn_target "amdgcn-amd-amdhsa--gfx950"\n.text\n'
    if P.pad is not None: s += f".p2align 10\n.fill {P.pad//4}, 4, 0xbf800000\n"
    s += entry(kn) + kernel()
    s += f"K_LAST:\n.set CODE_BYTES, K_LAST-{kn}\n"
    s += '.section .rodata,"a"\n.p2align 6\n' + kd(kn)
    return s
if __name__ == "__main__":
    for kv in sys.argv[2:]:
        k, v = kv.split("=", 1)
        assert hasattr(P, k), k
        setattr(P, k, eval(v))
    txt = build()
    open(sys.argv[1], "w").write(txt)
```

```python
import sys
from asmlib import Asm
from common import *

class P:
    stamp = False
    clk = 's_memrealtime'
    LA = 5; NWF = 6
    maxout = 8
    RD = 5
    pa = 4
    prio_g1 = 1; prio_tail = 3; prio_g2 = 0; prio_g2b = 0
    spin = 1 << 22
    pub_delay = 24; kv_delay = 20
    kvpoll = (-8, 3)
    e2frac = 8
    xla = 3
    cluster = True
    lastF = 12; lastA = 10
    mapn = 0
    ntx = 6
    sm_g2 = [[], [], [], []]
    sm_g1 = {}
    hi0 = 128; hi1 = 176
    hold = {}
    dlines = (48, 56, 56, 16)
    dskip = (0, 0)
    dmode = 0
    wrot = 's_lshl2_add_u32 s{R}, s{r}, s{s}'
    brot = (1, 2)
    split = 1; barat = 71; resat = 44
    pad = 256
    oflag = ''
    border = None
    progF = 'DW|WWWW . BBB . BBB . WB . WB . WBB . WBB . WBB . WBB . WBB . WBB . WBB . BBBP . BBB'
    progA = 'DW|WWWW . BBB . BBB . WB . WB . WBB . WBB . WBB . WBB . WBBB . BBBB . BPBBBB'
    thr2 = 9; thr2_until = 0
    sleep = 1
    nopoll = False; nob2 = False; hstore = 'sc1'
    st1 = ['g1_x0', 'g1_xdone', 'g1_ln', 'g1_u0', 'g1_u1', 'g1_u2', 'g1_7', 'g1_9', 'g1_11']
    st2 = ['g2_setup', 'g2_e0', 'g2_p1end', 'g2_s1', 'g2_c8', 'g2_c16', 'g2_c28', 'g2_mend', 'g2_end']

TBS = 144*1024
KV_OFF = 64*TBS; KV_SLOT = 4352
FL_H = KV_OFF + 128*KV_SLOT
FL_KV = FL_H + 16384
EPOCH = FL_KV + 4096
WS_USED = EPOCH + 128
TS_OFF = 128 << 20
RING = 0x10000; NRING = 5; MISC = 0x24000
AFR = RING + 2*16384; AFL = AFR + 4096
MF = "v_mfma_f32_32x32x16_bf16"
S_X, S_WQKV, S_WO, S_W1, S_W2, S_OUT, S_DBG, S_WS = 4, 6, 8, 12, 14, 16, 18, 20
R_X, R_W, R_WS, R_W2, R_WO, R_OUT = 24, 28, 32, 36, 40, 44
S_BUD, S_WV, S_I, S_IDX, S_TYPE, S_ROT, S_STRIDE, S_T, S_NONCE = 0, 3, 22, 23, 48, 49, 50, 51, 52
T0, T1, T2 = 54, 55, 1

def srd(a, d, base, size):
    a(f"""s_mov_b64 s[{d}:{d+1}], s[{base}:{base+1}]
    s_mov_b32 s{d+2}, {size}
    s_mov_b32 s{d+3}, 0x20000""")

NST = 10
S_DUM = 100
def stamp(a, name):
    if not P.stamp: return
    for lst in (P.st1, P.st2):
        if name in lst:
            n = lst.index(name) + 1
            a(f"{P.clk} s[{78+2*n}:{79+2*n}]")
def stamp_init(a):
    if not P.stamp: return
    a("s_memrealtime s[76:77]")
    a(f"{P.clk} s[78:79]")
    for n in range(1, NST): a(f"s_mov_b32 s{78+2*n}, 0")
def stamp_out(a, role):
    if not P.stamp: return
    a(f"""s_waitcnt vmcnt(0) lgkmcnt(0)
    {P.clk} s[56:57]
    s_memrealtime s[58:59]
    s_lshl_b32 s{T0}, s2, 3
    s_add_u32 s{T0}, s{T0}, s{S_WV}
    s_add_u32 s{T0}, s{T0}, {4*role}
    s_lshl_b32 s{T0}, s{T0}, 6
    s_add_u32 s{T0}, s{T0}, {TS_OFF}
    v_mov_b32 v1, s{T0}
    s_waitcnt lgkmcnt(0)""")
    srcs = [f"s{78+2*n}" for n in range(NST)] + ["0", "0", "0", "s56", "s58", "s76"]
    for n, s in enumerate(srcs):
        a(f"v_mov_b32 v2, {s}")
        a(f"global_store_dword v1, v2, s[{S_WS}:{S_WS+1}] offset:{4*n}")

class U: n = 0
def uid():
    U.n += 1; return U.n

def budget(n):
    return f"""s_sub_u32 s{S_BUD}, s{S_BUD}, {n}
    s_cmp_lt_i32 s{S_BUD}, 0"""

def nonce_load():
    return f"s_load_dwordx2 s[{S_NONCE}:{S_NONCE+1}], s[{S_DBG}:{S_DBG+1}], 0"
def nonce_check():
    n = uid()
    return f"""RE{n}:
    s_waitcnt lgkmcnt(0)
    s_cmp_lg_u32 s{S_NONCE+1}, 0
    s_cbranch_scc1 OK{n}
    s_sleep 4
    s_load_dwordx2 s[{S_NONCE}:{S_NONCE+1}], s[{S_DBG}:{S_DBG+1}], 0 glc
    {budget(16)}
    s_cbranch_scc0 RE{n}
    s_waitcnt lgkmcnt(0)
    OK{n}:
    s_mov_b32 s{S_NONCE+1}, s{S_NONCE}"""
def flag_set(base, off):
    return f"s_atomic_swap s{S_NONCE}, s[{base}:{base+1}], {off}"
def poll_load(dst, nw, base, off):
    if P.nopoll: return ""
    return f"s_load_dwordx{nw} s[{dst}:{dst+nw-1}], s[{base}:{base+1}], {off} glc"
def poll_check(dst, nw, base, off):
    if P.nopoll: return ""
    n = uid()
    NP = f"s[{S_NONCE}:{S_NONCE+1}]"
    t = [f"s_xor_b64 s[{dst+2*k}:{dst+2*k+1}], s[{dst+2*k}:{dst+2*k+1}], {NP}" for k in range(nw//2)]
    t += [f"s_or_b64 s[{dst}:{dst+1}], s[{dst}:{dst+1}], s[{dst+2*k}:{dst+2*k+1}]" for k in range(1, nw//2)]
    t = "\n".join(t)
    return f"""RE{n}:
    s_waitcnt lgkmcnt(0)
    {t}
    s_cbranch_scc0 OK{n}
    {f's_sleep {P.sleep}' if P.sleep else ''}
    {poll_load(dst, nw, base, off)}
    {budget(16)}
    s_cbranch_scc0 RE{n}
    s_waitcnt lgkmcnt(0)
    OK{n}:"""
def lds_wait(vd, vaddr, val):
    n = uid()
    return f"""RE{n}:
    ds_read_b32 v{vd}, v{vaddr}
    {budget(1)}
    s_cbranch_scc1 OK{n}
    s_waitcnt lgkmcnt(0)
    v_cmp_gt_u32 vcc, {val}, v{vd}
    s_cbranch_vccnz RE{n}
    OK{n}:"""

def cost(t):
    op = t.split()[0]
    if op.startswith('@') or op.endswith(':'): return 0
    if op.startswith(('v_exp', 'v_rcp', 'v_rsq')): return 8
    if op.startswith('v_mfma'): return 32
    if op.startswith(('buffer_', 'global_')): return 12
    if op.startswith('ds_'): return 8
    return 4
def gcost(it): return sum(cost(l.strip()) for l in it.split('\n') if l.strip())
def spread(fill, items, lo, hi):
    tot = sum(gcost(it) for it in items); acc = 0; n = hi - lo
    for it in items:
        c = gcost(it)
        fill.setdefault(lo + min(n - 1, int((acc + c/2) * n / max(tot, 1))), []).append(it)
        acc += c

SM = {'q': (S_WQKV, 6144), '1': (S_W1, 7168), '2': (S_W2, 7168), 'o': (S_WO, 2048)}
def smem_base(a, arr, dst):
    ptr, share = SM[arr]
    a(f"""s_mul_i32 s{dst}, s2, {share}
    s_lshl_b32 s{dst+1}, s{S_WV}, 7
    s_add_u32 s{dst}, s{dst}, s{dst+1}
    s_add_u32 s{dst}, s{dst}, s{ptr}
    s_addc_u32 s{dst+1}, s{ptr+1}, 0""")
def smem_loads(a, lst, bases):
    for arr, k0, n in lst:
        for k in range(k0, k0 + n):
            a(f"s_load_dwordx2 s[{S_DUM}:{S_DUM+1}], s[{bases[arr]}:{bases[arr]+1}], {k*512+60}")

def decode(a):
    a(f"""s_lshr_b32 s{S_IDX}, s{S_T}, 2
    s_lshr_b32 s{S_TYPE}, s{S_IDX}, 2
    s_and_b32 s{S_IDX}, s{S_IDX}, 3
    s_bfe_u32 s{T1}, s2, {0x10000 if P.mapn else 0x10002}
    s_lshl2_add_u32 s{S_IDX}, s{T1}, s{S_IDX}""")

def prologue(a):
    a(f"""s_load_dwordx16 s[4:19], s[0:1], 0
    s_load_dwordx2 s[20:21], s[0:1], 64
    s_cmp_ge_u32 s2, 256
    s_cbranch_scc1 K_END""")
    stamp_init(a)
    a(f"""s_getpc_b64 s[24:25]
    v_lshrrev_b32 v3, 5, v0
    s_lshr_b32 s{S_T}, s2, 3
    v_lshlrev_b32 v2, 7, v3
    v_lshl_add_u32 v2, s{S_T}, 11, v2
    v_min_u32 v2, CODE_BYTES-256, v2
    global_load_dword v47, v2, s[24:25]
    v_lshrrev_b32 v3, 6, v0
    v_and_b32 v0, 63, v0
    v_readfirstlane_b32 s{S_TYPE}, v3
    s_bfe_u32 s{T0}, s2, {0x20001 if P.mapn else 0x20000}
    s_and_b32 s{T1}, s{S_T}, 3
    s_lshl2_add_u32 s{S_I}, s{T0}, s{T1}
    s_lshr_b32 s{T0}, s{S_T}, 2
    {P.wrot.format(R=S_ROT, r=T1, s=T0)}
    s_and_b32 s{S_ROT}, s{S_ROT}, 7
    s_and_b32 s{S_WV}, s{S_TYPE}, 3
    v_lshrrev_b32 v1, 3, v0
    v_and_b32 v2, 7, v0
    v_lshrrev_b32 v4, 4, v0
    s_cmp_ge_u32 s{S_TYPE}, 4
    s_cbranch_scc1 G2_START
    @save top""")

X = 128; ACC = [64, 96]; WF = 40; PK = 24; TMP = 12
S_XROW, S_XLDS, S_XCH, S_A2B, S_COL0, S_C1, S_C2, S_ST, S_XLD2 = 56, 57, 58, 59, 60, 64, 65, 66, 67
S_MASK, S_FLA, S_KVF, S_KVW = 68, 70, 72, 74

def g1_start(a):
    XV = 64; XA = 68; ST = 76
    a(f"""v_xor_b32 v5, v2, v4
    v_lshlrev_b32 v5, 4, v5
    v_lshl_add_u32 v{XV}, v1, 10, v5
    v_xor_b32 v{XV+1}, 64, v{XV}
    v_add_u32 v{XV+1}, 7168, v{XV+1}
    v_add_u32 v{XV+2}, 14336, v{XV}
    v_add_u32 v{XV+3}, 14336, v{XV+1}
    s_lshl2_add_u32 s{T0}, s{S_I}, s{S_WV}
    s_lshl_b32 s{S_XROW}, s{T0}, 15
    s_lshl_b32 s{S_XLDS}, s{S_WV}, 14
    s_lshl_b32 s{S_XCH}, s{S_ROT}, 7
    s_mov_b32 s{R_X+2}, {2048*1024}
    s_mov_b32 s{R_X+3}, 0x20000
    s_mov_b32 m0, s{S_XLDS}
    s_add_u32 s{T1}, s{S_XROW}, s{S_XCH}
    s_waitcnt lgkmcnt(0)
    s_mov_b64 s[{R_X}:{R_X+1}], s[{S_X}:{S_X+1}]""")
    def xdma(c):
        if c:
            a(f"""s_add_u32 s{S_XCH}, s{S_XCH}, 128
            s_and_b32 s{S_XCH}, s{S_XCH}, 1023
            s_add_u32 m0, s{S_XLDS if c < 4 else S_XLD2}, {(c&3)*4096}
            s_add_u32 s{T1}, s{S_XROW}, s{S_XCH}""")
        for q in range(4):
            a(f"buffer_load_dwordx4 v{XV+q}, s[{R_X}:{R_X+3}], s{T1} offen offset:{q*1024} lds ; @tag x{c}")
    xdma(0)
    stamp(a, 'g1_karg')
    xdma(1)
    a("""s_branch G1_CONT
    @save g1c""")
    g2_stub(a)
    a("""G1_CONT:
    @restore g1c""")
    if P.prio_g1: a(f"s_setprio {P.prio_g1}")
    B1 = {'q': 36, '1': 38, '2': 40, 'o': 42}
    for arr in sorted({x[0] for l in P.sm_g1.values() for x in l}): smem_base(a, arr, B1[arr])
    smem_loads(a, P.sm_g1.get('start', []), B1)
    a(f"""s_add_u32 s44, s{S_WS}, {EPOCH}
    s_addc_u32 s45, s{S_WS+1}, 0
    s_or_b32 s46, s2, s{S_WV}
    s_cbranch_scc1 G1_NOEP
    s_load_dword s{S_NONCE}, s[44:45], 0 glc
    G1_NOEP:""")
    decode(a)
    srd(a, R_WS, S_WS, WS_USED)
    a(f"""s_mov_b32 s{S_BUD}, {P.spin}
    s_add_u32 s{S_XLD2}, s{S_XLDS}, {RING+16384}
    s_mul_i32 s{S_A2B}, s{T0}, {TBS}
    s_lshr_b32 s{T1}, s{T0}, 1
    s_lshr_b32 s{T2}, s{S_IDX}, 1
    s_lshl2_add_u32 s{T1}, s{T1}, s{T2}
    s_lshl_b32 s{T1}, s{T1}, 7
    s_and_b32 s{T0}, s{T0}, 1
    s_and_b32 s{T2}, s{S_IDX}, 1
    s_lshl1_add_u32 s{T0}, s{T2}, s{T0}
    s_lshl2_add_u32 s{T0}, s{T0}, s{T1}
    s_add_u32 s{T0}, s{T0}, {FL_H}
    s_add_u32 s{S_FLA}, s{S_WS}, s{T0}
    s_addc_u32 s{S_FLA+1}, s{S_WS+1}, 0""")
    a(f"""v_and_b32 v6, 31, v0
    v_lshrrev_b32 v7, 5, v0
    v_bfe_u32 v8, v0, 1, 3
    v_lshlrev_b32 v9, 7, v6
    v_add_u32 v9, s{S_XLDS}, v9""")
    for t in range(4):
        a(f"""v_add_u32 v10, {2*t}, v7
        v_xor_b32 v10, v10, v8
        v_lshl_add_u32 v{XA+t}, v10, 4, v9
        v_add_u32 v{XA+4+t}, {RING+16384}, v{XA+t}""")
    a(f"""v_bfe_u32 v8, v0, 2, 2
    v_lshl_add_u32 v9, v7, 3, v8
    v_and_b32 v10, 1, v4
    v_and_b32 v11, 3, v0
    v_lshlrev_b32 v10, 5, v10
    v_lshl_add_u32 v10, v11, 3, v10
    v_lshl_add_u32 v6, v9, 6, v10
    v_add_u32 v6, {RING}, v6
    v_lshrrev_b32 v8, 1, v8
    v_lshlrev_b32 v8, 6, v8
    v_xor_b32 v10, v10, v8
    v_lshl_add_u32 v2, v9, 7, v10
    v_add_u32 v2, {RING}, v2
    v_xor_b32 v3, 64, v2
    v_add_u32 v4, 0x10000, v2
    v_add_u32 v5, 0x10000, v3
    v_lshlrev_b32 v1, 4, v0
    s_mov_b32 s{S_C1}, 0x3f803f80""")
    for e in range(4): a(f"v_mov_b32 v{ST+e}, 0")
    for c in range(2, P.xla): xdma(c)
    def stats(c):
        for d in range(16):
            r = X+16*c+d
            a(f"v_dot2_f32_bf16 v{ST+(d&1)}, v{r}, s{S_C1}, v{ST+(d&1)}")
            a(f"v_dot2_f32_bf16 v{ST+2+(d&1)}, v{r}, v{r}, v{ST+2+(d&1)}")
    for c in range(8):
        a(f"@wait_vm x{c}")
        if c == 0: stamp(a, 'g1_x0')
        for t in range(4):
            a(f"ds_read_b128 {vr(X+16*c+4*t,4)}, v{XA+t+(4 if c >= 4 else 0)} offset:{(c&3)*4096}")
        if c + P.xla < 8:
            xdma(c + P.xla)
            if c + P.xla == 7: a("s_barrier")
        if c == 1:
            a(f"""s_cmp_lg_u32 s46, 0
            s_cbranch_scc1 G1_NONONCE
            @off
            s_mov_b32 s{S_NONCE+1}, 1
            s_waitcnt lgkmcnt(0)
            s_mul_i32 s{S_NONCE}, s{S_NONCE}, 1664525
            s_add_u32 s{S_NONCE}, s{S_NONCE}, 1013904223
            s_atomic_swap_x2 s[{S_NONCE}:{S_NONCE+1}], s[{S_DBG}:{S_DBG+1}], 0
            s_atomic_swap s{S_NONCE}, s[44:45], 0
            @on
            G1_NONONCE:""")
        if c: stats(c - 1)
    a("@wait_lgkm xr")
    a("s_barrier")
    stats(7)
    stamp(a, 'g1_xdone')
    a(f"""v_add_f32 v10, v{ST}, v{ST+1}
    v_add_f32 v8, v{ST+2}, v{ST+3}
    v_mov_b32 v11, v10
    v_mov_b32 v9, v8
    s_cmp_eq_u32 s{S_TYPE}, 0
    s_mov_b32 s{T0}, {hx(LOG2E)}
    v_permlane32_swap_b32 v10, v11
    v_permlane32_swap_b32 v8, v9
    s_cselect_b32 s{T0}, s{T0}, {hx(-LOG2E)}
    v_add_f32 v10, v10, v11
    v_add_f32 v8, v8, v9
    v_mul_f32 v10, {hx(1/512)}, v10
    v_mul_f32 v8, {hx(1/512)}, v8
    v_fma_f32 v8, -v10, v10, v8
    v_max_f32 v8, 0, v8
    v_add_f32 v8, {hx(1e-5)}, v8
    v_rsq_f32 v8, v8
    s_mov_b32 s{S_C2}, 0xffff0000
    v_mul_f32 v8, s{T0}, v8
    v_mul_f32 v10, -v10, v8
    v_mov_b32 v9, v8
    v_mov_b32 v11, v10""")
    for ks in range(32):
        smem_loads(a, P.sm_g1.get(ks, []), B1)
        if ks == 15: a(nonce_load())
        for d in range(4):
            r = X+4*ks+d; t = TMP + 2*d
            a(f"v_lshlrev_b32 v{t}, 16, v{r}")
            a(f"v_and_b32 v{t+1}, s{S_C2}, v{r}")
        for d in range(4):
            t = TMP + 2*d
            a(f"v_pk_fma_f32 {vr(t,2)}, {vr(t,2)}, v[8:9], v[10:11]")
        for d in range(4):
            t = TMP + 2*d
            a(f"v_cvt_pk_bf16_f32 v{X+4*ks+d}, v{t}, v{t+1}")
    a(nonce_check())
    stamp(a, 'g1_ln')
    a(f"""s_cmp_eq_u32 s{S_TYPE}, 0
    s_cbranch_scc1 G1_A
    @save g1""")

def g1_main(a, units, fill, lastbar):
    slots = []; tile0 = 0
    for (half, wa, buf) in units:
        for ks in range(32):
            if half: slots.append((tile0 + ks//16, (ks % 16)*1024, 0, True, ACC[buf], ks, wa))
            else:
                for b in range(2): slots.append((tile0 + ks//8, (ks % 8)*2048, b, False, ACC[buf]+16*b, ks, wa))
        tile0 += 2 if half else 4
    def rd(n):
        tile, off, b, half, acc, ks, wa = slots[n]
        if n % 16 == 0 and tile <= lastbar:
            for it in fill.get(('bar', tile), []): a(it)
            stamp(a, f'g1_b{tile}')
            a("s_barrier")
        sl = tile % NRING
        f = WF + 4*(n % P.NWF)
        if half:
            assert sl < 4
            ad = 6; o = sl*16384 + off; o2 = o + 256
        else:
            ad = (2 if sl < 4 else 4) + b; o = (sl % 4)*16384 + off; o2 = o + 512
        a(f"ds_read_b64_tr_b16 {vr(f,2)}, v{ad} offset:{o}")
        a(f"ds_read_b64_tr_b16 {vr(f+2,2)}, v{ad} offset:{o2}")
    for n in range(P.LA): rd(n)
    for n, (tile, off, b, half, acc, ks, wa) in enumerate(slots):
        f = WF + 4*(n % P.NWF)
        A, B = (vr(f,4), vr(X+4*ks,4)) if wa else (vr(X+4*ks,4), vr(f,4))
        a(f"{MF} {vr(acc,16)}, {A}, {B}, {'0' if ks == 0 else vr(acc,16)}")
        if n + P.LA < len(slots): rd(n + P.LA)
        for it in fill.get(n, []): a(it)
        if n % 64 == 63 or n == len(slots) - 1: stamp(a, ['g1_u0','g1_u1','g1_u2','g1_7'][n//64])

def silu_ops(acc, nb, un, O=24):
    T = 12
    out = [f"s_add_u32 s{S_ST}, s{S_A2B}, s{S_COL0+un}"]
    pend = []; late = []
    for p in range(8*nb):
        r0, r1 = acc+2*p, acc+2*p+1
        t0, t1 = T + 2*(p & 1), T + 2*(p & 1) + 1
        out.append(f"v_exp_f32 v{t0}, v{r0}")
        out.extend(pend)
        out += [f"v_exp_f32 v{t1}, v{r1}", f"v_add_f32 v{t0}, 1.0, v{t0}", f"v_rcp_f32 v{t0}, v{t0}",
                f"v_add_f32 v{t1}, 1.0, v{t1}", f"v_rcp_f32 v{t1}, v{t1}", f"v_mul_f32 v{r0}, v{t0}, v{r0}"]
        fr = p//4; o = O + 4*fr
        pend = [f"v_mul_f32 v{r1}, v{t1}, v{r1}", f"v_cvt_pk_bf16_f32 v{o+(p&3)}, v{r0}, v{r1}"]
        if p % 4 == 3 and P.hstore is not None:
            (late if P.cluster else pend).append(
                f"buffer_store_dwordx4 {vr(o,4)}, v1, s[{R_WS}:{R_WS+3}], s{S_ST} offen offset:{fr*1024} {P.hstore}")
    out.extend(pend)
    if late: out.append("\n".join(late))
    return out

def g1_f(a):
    fill = {}
    spread(fill, [f"s_mul_i32 s{T0}, s{S_IDX}, 14\ns_and_b32 s{T1}, s{S_IDX}, 1",
                  f"s_lshl1_add_u32 s{T2}, s{T1}, s{T0}\ns_lshl_b32 s{S_COL0}, s{T2}, 10",
                  f"s_add_u32 s{S_COL0+1}, s{S_COL0}, 4096\ns_add_u32 s{S_COL0+2}, s{S_COL0}, 8192",
                  f"s_cmp_eq_u32 s{T1}, 0\ns_cselect_b32 s{T1}, 12, 0",
                  f"s_add_u32 s{T0}, s{T0}, s{T1}\ns_lshl_b32 s{S_COL0+3}, s{T0}, 10"], 20, 30)
    spread(fill, silu_ops(ACC[0], 2, 0), 66, P.hi0)
    spread(fill, silu_ops(ACC[1], 2, 1), 130, P.hi1)
    ops2 = silu_ops(ACC[0], 2, 2)
    h = len(ops2)*P.e2frac//8
    spread(fill, ops2[:h], 194, 224)
    fill.setdefault(min(P.hi0 - 1 + P.pub_delay, 223), []).append("@wait_vm st0\n" + flag_set(S_FLA, 0))
    fill.setdefault(min(P.hi1 - 1 + P.pub_delay, 223), []).append("@wait_vm st1\n" + flag_set(S_FLA, 16))
    g1_main(a, [(False, True, 0), (False, True, 1), (False, True, 0), (True, True, 1)], fill, P.lastF)
    if P.prio_tail != P.prio_g1: a(f"s_setprio {P.prio_tail}")
    for op in ops2[h:]: a(op)
    for op in silu_ops(ACC[1], 1, 3, O=WF): a(op)
    stamp(a, 'g1_8')
    a("@wait_vm st2"); a(flag_set(S_FLA, 32))
    a("@wait_vm st3"); a(flag_set(S_FLA, 48))
    stamp(a, 'g1_9')
    stamp_out(a, 0)
    a("s_endpgm")

def phi_ops(acc, zacc):
    T = 12; S_C0, S_LN2 = S_COL0, S_COL0+1
    out = []; pend = []
    for p in range(16):
        r0, r1 = acc+2*p, acc+2*p+1
        t0, t1 = T + 2*(p & 1), T + 2*(p & 1) + 1
        out += [f"v_exp_f32 v{t0}, v{r0} clamp", f"v_max_f32 v{r0}, s{S_C0}, v{r0}"]
        out.extend(pend)
        out += [f"v_exp_f32 v{t1}, v{r1} clamp", f"v_max_f32 v{r1}, s{S_C0}, v{r1}",
                f"v_fmac_f32 v{t0}, s{S_LN2}, v{r0}", f"v_fmac_f32 v{t1}, s{S_LN2}, v{r1}"]
        pend = [f"v_cvt_pk_bf16_f32 v{PK+p}, v{t0}, v{t1}"]
        if zacc is not None and p >= 1:
            q = p - 1; z = zacc + q//8
            pend.append(f"v_dot2_f32_bf16 v{z}, v{PK+q}, s{S_C1}, {'0' if q % 8 == 0 else f'v{z}'}")
    out.extend(pend)
    if zacc is not None: out.append(f"v_dot2_f32_bf16 v{zacc+1}, v{PK+15}, s{S_C1}, v{zacc+1}")
    return out

def g1_a(a):
    S_C0, S_LN2, S_KVG, S_KVS = S_COL0, S_COL0+1, S_COL0+2, S_COL0+3
    MASK = f"s[{S_MASK}:{S_MASK+1}]"
    a("G1_A:")
    a("@restore g1")
    fill = {}
    def put(g, ops): fill.setdefault(g, []).extend(ops)
    spread(fill, [f"s_mov_b32 s{S_C0}, {hx(1e-6*LOG2E)}\ns_mov_b32 s{S_LN2}, {hx(LN2)}",
           f"s_mul_i32 s{S_KVG}, s{S_IDX}, {16*KV_SLOT}\ns_add_u32 s{S_KVG}, s{S_KVG}, {KV_OFF}",
           f"s_lshl2_add_u32 s{T0}, s{S_IDX}, s{S_WV}\ns_lshl_b32 s{T0}, s{T0}, 7",
           f"s_add_u32 s{T0}, s{T0}, {FL_KV}\ns_lshl2_add_u32 s{T1}, s{S_I}, s{T0}",
           f"s_add_u32 s{S_KVF}, s{S_WS}, s{T0}\ns_addc_u32 s{S_KVF+1}, s{S_WS+1}, 0",
           f"s_add_u32 s{S_KVW}, s{S_WS}, s{T1}\ns_addc_u32 s{S_KVW+1}, s{S_WS+1}, 0",
           f"s_mov_b32 s{S_MASK}, 0x0000ffff\ns_mov_b32 s{S_MASK+1}, 0x0000ffff",
           "v_bfe_u32 v8, v0, 4, 1", "v_lshlrev_b32 v8, 10, v8", "v_and_b32 v9, 15, v0", "v_lshl_add_u32 v8, v9, 4, v8",
           "v_lshl_add_u32 v8, v7, 8, v8", f"s_lshl_b32 s{T0}, s{S_WV}, 12\ns_add_u32 s{T0}, s{T0}, {MISC}\nv_add_u32 v8, s{T0}, v8",
           "v_lshlrev_b32 v11, 2, v0", f"v_add_u32 v11, {MISC}, v11", f"s_lshl_b32 s{T0}, s{S_WV}, 8\nv_add_u32 v9, s{T0}, v11",
           f"s_lshl_b32 s{T0}, s{S_WV}, 10\ns_add_u32 s{T1}, s{T0}, {MISC}\nv_add_u32 v10, s{T1}, v1",
           f"s_mul_i32 s{T1}, s{S_I}, {KV_SLOT}\ns_add_u32 s{S_ST}, s{T1}, s{S_KVG}",
           f"s_add_u32 s{S_KVS}, s{T0}, s{S_ST}"], 14, 58)
    Z = 16
    ops = phi_ops(ACC[0], Z)
    ops += [f"v_permlane32_swap_b32 v{Z}, v{Z+1}", f"v_add_f32 v{Z}, v{Z}, v{Z+1}", f"ds_write_b32 v9, v{Z}"]
    g7 = 16*7 - P.LA
    spread(fill, ops, 66, g7)
    fill[('bar', 7)] = ["@wait_lgkm zw"]
    put(g7, [f"ds_read_b32 v{12+p}, v11 offset:{p*256}" for p in range(4)])
    spread(fill, ["v_add_f32 v12, v12, v13", "v_add_f32 v14, v14, v15", f"v_subrev_u32 v11, {MISC-4096}, v11", "v_add_f32 v22, v12, v14"], g7 + 4, g7 + 8)
    V = ACC[1]; D = ACC[1] + 16; T = 12
    cv = [f"v_cvt_pk_bf16_f32 v{V+e}, v{V+2*e}, v{V+2*e+1}" for e in range(16)]
    def kvm(b): return [f"{MF} {vr(D,16)}, {vr(PK+8*b,4)}, {vr(V+8*b,4)}, 0", f"{MF} {vr(D,16)}, {vr(PK+8*b+4,4)}, {vr(V+8*b+4,4)}, {vr(D,16)}"]
    def sel(b):
        return ([f"v_cndmask_b32 v{T+e}, v{D+8+e}, v{D+e}, {MASK}" for e in range(8)],
                [f"ds_write_b128 v8, {vr(T+4*q,4)} offset:{b*2048+q*512}" for q in range(2)])
    g = 129; g9 = 16*9 - P.LA
    put(g, cv[:8]); put(g+1, cv[8:]); put(g+2, kvm(0))
    o, w = sel(0); put(g+5, o + kvm(1) + w)
    o, w = sel(1); put(min(g+8, g9-1), o + w)
    fill[('bar', 9)] = ["@wait_lgkm kvw"]
    g = g9
    put(g, [f"ds_read_b128 {vr(V+4*p,4)}, v10 offset:{p*4096}" for p in range(4)])
    ops = [f"v_add_f32 v{V+e}, v{V+e}, v{V+4+e}" for e in range(4)]
    ops += [f"v_add_f32 v{V+8+e}, v{V+8+e}, v{V+12+e}" for e in range(4)]
    ops += [f"v_add_f32 v{V+e}, v{V+e}, v{V+8+e}" for e in range(4)]
    ops += [f"buffer_store_dwordx4 {vr(V,4)}, v1, s[{R_WS}:{R_WS+3}], s{S_KVS} offen sc1",
            f"buffer_store_dword v22, v11, s[{R_WS}:{R_WS+3}], s{S_ST} offen sc1"]
    put(g+3, ops)
    put(g+5, [f"s_lshl2_add_u32 s{T0}, s{S_WV}, {AFL}\nv_mov_b32 v18, s{T0}", "v_mov_b32 v23, 0", "ds_write_b32 v18, v23"])
    put(g+6, ["v_and_b32 v19, 3, v0", "v_lshlrev_b32 v19, 2, v19", f"v_add_u32 v19, {AFL}, v19"])
    fill[('bar', 10)] = ["@wait_lgkm fz"]
    assert P.lastA >= 10
    spread(fill, ["v_and_b32 v21, 15, v0", "v_bfe_u32 v8, v0, 4, 1", f"v_mul_u32_u24 v9, {KV_SLOT}, v8",
           "v_lshl_add_u32 v9, v21, 4, v9", "v_lshl_add_u32 v9, v7, 8, v9", f"v_mul_u32_u24 v11, {KV_SLOT}, v21",
           "v_lshl_add_u32 v11, v8, 5, v11", "v_lshl_add_u32 v11, v7, 4, v11", f"v_subrev_u32 v8, {MISC-AFR}, v10", f"v_add_u32 v10, {AFR}, v1",
           "v_mov_b32 v23, 1",
           f"s_lshl2_add_u32 s{T0}, s{S_IDX}, 112\ns_lshl_b32 s{T0}, s{T0}, 10\ns_add_u32 s{S_ST}, s{T0}, s{S_A2B}",
           f"s_lshl_b32 s{T0}, s{S_WV}, 6\ns_add_u32 s{T0}, s{T0}, s{S_KVG}\ns_add_u32 s{S_KVS}, s{T0}, 4096",
           f"s_lshl_b32 s{T0}, s{S_WV}, 10\ns_add_u32 s{S_KVG}, s{T0}, s{S_KVG}"], g + 7, g + 22)
    put(min(g + 4 + P.kv_delay, 191), ["@wait_vm kvs\n" + flag_set(S_KVW, 0)])
    if P.kvpoll[0] < 0: put(191 + P.kvpoll[0], [poll_load(4, 16, S_KVF, 0)])
    g1_main(a, [(False, False, 0), (False, False, 1), (False, True, 0)], fill, P.lastA)
    if P.prio_tail != P.prio_g1: a(f"s_setprio {P.prio_tail}")
    ph = phi_ops(ACC[0], None)
    n1 = len(ph)*max(P.kvpoll[0], 0)//8; n2 = len(ph)*P.kvpoll[1]//8
    for op in ph[:n1]: a(op)
    if P.kvpoll[0] >= 0: a(poll_load(4, 16, S_KVF, 0))
    for op in ph[n1:n2]: a(op)
    stamp(a, 'g1_7')
    a(poll_check(4, 16, S_KVF, 0))
    stamp(a, 'g1_8')
    ZR = X + 64
    a(f"buffer_load_dwordx4 {vr(ZR,4)}, v11, s[{R_WS}:{R_WS+3}], s{S_KVS} offen sc1")
    for m in range(8):
        for q in range(2):
            a(f"buffer_load_dwordx4 {vr(X+8*m+4*q,4)}, v9, s[{R_WS}:{R_WS+3}], s{S_KVG} offen offset:{q*512} sc1")
        if m < 7: a(f"s_add_u32 s{S_KVG}, s{S_KVG}, {2*KV_SLOT}")
    for op in ph[n2:]: a(op)
    for sh in (1, 2, 4, 8):
        for e in range(4): a(f"v_add_f32 v{ZR+e}, v{ZR+e}, v{ZR+e} row_ror:{sh} row_mask:0xf bank_mask:0xf")
    for e in range(4): a(f"v_mov_b32 v{ZR+4+e}, v{ZR+e}")
    for e in range(4): a(f"v_permlane16_swap_b32 v{ZR+e}, v{ZR+4+e}")
    for e in range(4): a(f"v_cvt_pk_bf16_f32 v{ZR+e}, v{ZR+2*e}, v{ZR+2*e+1}")
    for m in range(1, 8):
        for e in range(8): a(f"v_add_f32 v{X+e}, v{X+e}, v{X+8*m+e}")
    for e in range(4): a(f"v_permlane16_swap_b32 v{X+e}, v{X+4+e}")
    for e in range(4): a(f"v_add_f32 v{X+e}, v{X+e}, v{X+4+e}")
    for e in range(2): a(f"v_cvt_pk_bf16_f32 v{X+e}, v{X+2*e}, v{X+2*e+1}")
    for e in range(2): a(f"v_mov_b32 v{X+2+e}, v{X+e}")
    for e in range(2): a(f"v_permlane16_swap_b32 v{X+e}, v{X+2+e}")
    for e in range(4): a(f"v_cndmask_b32 v{ZR+e}, v{ZR+e}, v{X+e}, {MASK}")
    a(f"ds_write_b128 v8, {vr(ZR,4)}")
    a("ds_write_b32 v18, v23")
    stamp(a, 'g1_9')
    a(lds_wait(21, 19, 1))
    for hd in range(4): a(f"ds_read_b128 {vr(WF+4*hd,4)}, v10 offset:{hd*1024}")
    for hd in range(4): a(f"{MF} {vr(64+16*hd,16)}, {vr(WF+4*hd,4)}, {vr(PK+4*hd,4)}, 0")
    for hd in range(4):
        d = 64+16*hd
        a(f"""v_add_f32 v16, {hx(1e-6)}, v{d+8}
        v_rcp_f32 v16, v16""")
        for e in range(8): a(f"v_mul_f32 v{d+e}, -v{d+e}, v16")
        for e in range(4): a(f"v_cvt_pk_bf16_f32 v{d+e}, v{d+2*e}, v{d+2*e+1}")
        a(f"buffer_store_dwordx4 {vr(d,4)}, v1, s[{R_WS}:{R_WS+3}], s{S_ST} offen offset:{hd*1024} sc1")
    stamp(a, 'g1_10')
    a("s_waitcnt vmcnt(0)")
    a(flag_set(S_FLA, 64))
    stamp(a, 'g1_11')
    stamp_out(a, 0)
    a("s_endpgm")

A2R = 8; B2R = 48; AC2 = 192
WV_F = AC2; WV_H = AC2 + 4; DUM = AC2 + 8
S_TH, S_THH, S_TO, S_TB, S_SO = 56, 60, 64, 68, 70
M16 = "v_mfma_f32_16x16x32_bf16"
S_RB = 4; S_CB = 10; S_LW = 14; S_LX = 15; S_FH = 16
S_POLL = R_W

B2S = {'q': 52, '1': 98, '2': 52, 'o': 98}
def g2_stub(a):
    a("G2_START:")
    a("@restore top")
    a("s_waitcnt lgkmcnt(0)")
    if P.sm_g2[0]:
        for arr in sorted({x[0] for x in P.sm_g2[0]}): smem_base(a, arr, B2S[arr])
        smem_loads(a, P.sm_g2[0], B2S)
    a("s_branch G2_CONT")

def g2_setup(a):
    a("G2_CONT:")
    a("@restore top")
    for arr in sorted({x[0] for l in P.sm_g2[1:] for x in l} - {x[0] for x in P.sm_g2[0]}): smem_base(a, arr, B2S[arr])
    decode(a)
    a(f"""s_cmp_eq_u32 s{S_TYPE}, 0
    s_movk_i32 s{T0}, 3072
    s_cselect_b32 s{S_STRIDE}, s{T0}, 3584
    v_and_b32 v4, 1, v4
    v_lshlrev_b32 v5, 2, v4
    v_xor_b32 v5, v5, v2
    v_lshlrev_b32 v5, 4, v5
    v_mad_u32_u24 v{WV_F}, v1, s{S_STRIDE}, v5
    s_lshl_b32 s{T0}, s{S_STRIDE}, 3
    s_sub_u32 s{T0}, s{T0}, 1024
    v_add_u32 v{WV_F+1}, s{T0}, v{WV_F}
    v_add_u32 v{WV_F+2}, s{T0}, v{WV_F+1}
    v_add_u32 v{WV_F+3}, s{T0}, v{WV_F+2}
    v_lshrrev_b32 v8, 2, v0
    v_and_b32 v9, 3, v0
    v_lshlrev_b32 v10, 4, v9
    v_mad_u32_u24 v{WV_H}, v8, s{S_STRIDE}, v10
    s_lshl_b32 s{T0}, s{S_STRIDE}, 4
    s_sub_u32 s{T0}, s{T0}, 1024
    v_add_u32 v{WV_H+1}, s{T0}, v{WV_H}
    v_add_u32 v{WV_H+2}, s{T0}, v{WV_H+1}
    v_add_u32 v{WV_H+3}, s{T0}, v{WV_H+2}
    s_mov_b32 s{S_BUD}, {P.spin}""")
    if P.prio_g2: a(f"s_setprio {P.prio_g2}")
    a(f"""s_cmp_eq_u32 s{S_TYPE}, 0
    s_cselect_b64 s[{R_W}:{R_W+1}], s[{S_WQKV}:{S_WQKV+1}], s[{S_W1}:{S_W1+1}]
    s_lshl_b32 s{R_W+2}, s{S_STRIDE}, 9
    s_mov_b32 s{R_W+3}, 0x20000""")
    srd(a, R_X, S_X, 2048*1024)
    srd(a, R_WS, S_WS, WS_USED)
    srd(a, R_W2, S_W2, 1792*1024)
    srd(a, R_WO, S_WO, 512*1024)
    srd(a, R_OUT, S_OUT, 2048*1024)
    if P.dmode == 1:
        a(f"""s_lshl2_add_u32 s{T0}, s2, s{S_WV}
        s_mul_i32 s{T1}, s{T0}, 14
        v_min_u32 v11, 13, v0
        v_add_lshl_u32 v11, v11, s{T1}, 7
        v_mov_b32 v{DUM+1}, s{S_W2+1}
        v_add_co_u32 v{DUM}, vcc, s{S_W2}, v11
        v_addc_co_u32 v{DUM+1}, vcc, 0, v{DUM+1}, vcc
        s_lshl_b32 s{T1}, s{T0}, 2
        v_add_lshl_u32 v11, v9, s{T1}, 7
        v_mov_b32 v13, s{S_WO+1}
        v_add_co_u32 v12, vcc, s{S_WO}, v11
        v_addc_co_u32 v13, vcc, 0, v13, vcc
        v_cmp_gt_u32 vcc, 16, v0
        v_cndmask_b32 v{DUM}, v12, v{DUM}, vcc
        v_cndmask_b32 v{DUM+1}, v13, v{DUM+1}, vcc""")
    elif P.dmode == 0:
        a(f"""s_cmp_eq_u32 s{S_WV}, 1
        s_cselect_b64 s[56:57], s[{S_W1}:{S_W1+1}], s[{S_WQKV}:{S_WQKV+1}]
        s_cselect_b32 s{T0}, 56, 48
        s_cmp_eq_u32 s{S_WV}, 2
        s_cselect_b64 s[56:57], s[{S_W2}:{S_W2+1}], s[56:57]
        s_cselect_b32 s{T0}, 56, s{T0}
        s_cmp_eq_u32 s{S_WV}, 3
        s_cselect_b64 s[56:57], s[{S_WO}:{S_WO+1}], s[56:57]
        s_cselect_b32 s{T0}, 16, s{T0}
        s_mul_i32 s{T1}, s{T0}, s2
        s_sub_u32 s{T0}, s{T0}, 1
        s_cmp_eq_u32 s{S_WV}, 0
        s_cselect_b32 s{T2}, {P.dskip[0]}, 0
        s_cmp_eq_u32 s{S_WV}, 1
        s_cselect_b32 s{T2}, {P.dskip[1]}, s{T2}
        v_min_u32 v11, s{T0}, v0
        v_max_u32 v11, s{T2}, v11
        v_add_lshl_u32 v11, v11, s{T1}, 7
        v_mov_b32 v{DUM+1}, s57
        v_add_co_u32 v{DUM}, vcc, s56, v11
        v_addc_co_u32 v{DUM+1}, vcc, 0, v{DUM+1}, vcc""")
    smem_loads(a, P.sm_g2[1], B2S)
    a(f"""s_lshr_b32 s{T0}, s{S_WV}, 1
    s_add_u32 s{T0}, s{T0}, s{S_ROT}
    s_and_b32 s{T1}, s{S_WV}, 1
    s_lshl1_add_u32 s{T2}, s{T0}, s{T1}""")
    for tau in range(4):
        a(f"""s_add_u32 s{T0}, s{T2}, {4*tau}
        s_and_b32 s{T0}, s{T0}, 15
        s_lshl_b32 s{T0}, s{T0}, 5
        s_mul_i32 s{S_RB+tau}, s{T0}, s{S_STRIDE}""")
    for tau in range(2):
        a(f"""s_add_u32 s{T0}, s{S_ROT}, s{S_WV}
        s_add_u32 s{T0}, s{T0}, {4*tau}
        s_and_b32 s{T0}, s{T0}, 7
        s_lshl_b32 s{T0}, s{T0}, 6
        s_mul_i32 s{S_RB+4+tau}, s{T0}, s{S_STRIDE}""")
    a(f"""s_lshl_b32 s58, s{S_IDX}, 7
    s_mul_i32 s59, s{S_IDX}, 448
    s_and_b32 s60, s{S_IDX}, 1
    s_lshl_b32 s{T0}, s60, 6
    s_add_u32 s61, s{T0}, s59
    s_add_u32 s62, s58, 1024
    s_add_u32 s{T0}, s58, 2048
    s_add_u32 s{T1}, s61, 128
    s_add_u32 s{T2}, s61, 256
    s_cmp_eq_u32 s{S_TYPE}, 0
    s_cselect_b32 s{S_CB}, s62, s61
    s_cselect_b32 s{S_CB+1}, s{T0}, s{T1}
    s_cselect_b32 s{S_CB+2}, s58, s{T2}
    s_cmp_eq_u32 s60, 0
    s_cselect_b32 s{T0}, 384, 0
    s_add_u32 s{S_CB+3}, s59, s{T0}
    s_lshl_b32 s{S_LW}, s{S_WV}, 12
    s_add_u32 s{S_LW}, s{S_LW}, {RING}
    s_lshl_b32 s{S_LX}, s{S_WV}, 14""")
    a(f"""s_lshr_b32 s{T0}, s{S_IDX}, 2
    s_lshl1_add_u32 s{T0}, s{S_I}, s{T0}
    s_lshr_b32 s{T2}, s{S_T}, 2
    s_xor_b32 s{T2}, s{T2}, {P.ntx}
    s_lshl_b32 s{T2}, s{T2}, 7
    v_lshrrev_b32 v4, 4, v0
    v_lshlrev_b32 v5, 1, v4
    v_xor_b32 v5, v5, v2
    v_lshlrev_b32 v5, 4, v5
    v_lshl_add_u32 v1, v1, 10, v5
    v_add_u32 v1, s{T2}, v1
    v_add_u32 v2, 7168, v1
    s_lshl2_add_u32 s{T1}, s{T0}, s{S_WV}
    s_lshl_b32 s{T1}, s{T1}, 7
    s_add_u32 s{T1}, s{T1}, {FL_H}
    s_add_u32 s{S_FH}, s{S_WS}, s{T1}
    s_addc_u32 s{S_FH+1}, s{S_WS+1}, 0
    s_lshl_b32 s{T1}, s{S_TYPE}, 1
    s_xor_b32 s{T1}, s{T1}, s{S_WV}
    s_lshl2_add_u32 s{T0}, s{T0}, s{T1}
    s_lshl_b32 s{S_STRIDE}, s{T0}, 14
    s_add_u32 s{S_STRIDE}, s{S_STRIDE}, s{T2}
    s_lshr_b32 s{T0}, s{T0}, 1
    s_mul_i32 s{S_TB}, s{T0}, {TBS}
    s_xor_b32 s{T0}, s{T0}, 1
    s_mul_i32 s{S_TB+1}, s{T0}, {TBS}
    s_and_b32 s{T1}, s{T1}, 1
    s_lshl_b32 s{T1}, s{T1}, 8
    v_and_b32 v6, 15, v0
    v_lshlrev_b32 v6, 4, v6
    v_lshl_add_u32 v6, v4, 9, v6
    v_add_u32 v5, s{T1}, v6
    v_xor_b32 v6, 256, v5
    v_and_b32 v8, 3, v8
    v_and_b32 v10, 1, v4
    v_lshl_add_u32 v10, v10, 2, v8
    v_lshrrev_b32 v11, 1, v10
    v_lshlrev_b32 v11, 5, v11
    v_lshl_add_u32 v11, v9, 3, v11
    v_lshl_add_u32 v11, v10, 7, v11
    v_lshrrev_b32 v10, 5, v0
    v_lshl_add_u32 v11, v10, 11, v11
    v_add_u32 v0, s{S_LX}, v11
    v_xor_b32 v3, 32, v0
    v_xor_b32 v4, 64, v0
    v_xor_b32 v7, 0x60, v0""")
    smem_loads(a, P.sm_g2[2], B2S)
    g2_tables(a)
    smem_loads(a, P.sm_g2[3], B2S)
    stamp(a, 'g2_setup')
    a("s_barrier")

def g2_tables(a):
    a(f"""s_lshr_b32 s{T2}, s{S_T}, 2
    s_mul_i32 s{T2}, s{T2}, {P.brot[0]}
    s_mul_i32 s{T0}, s{S_T}, {P.brot[1]}
    s_add_u32 s{T2}, s{T2}, s{T0}
    s_mul_i32 s{S_I}, s{S_WV}, 28
    s_lshl_b32 s{S_IDX}, s{S_WV}, 3""")
    for j in range(4):
        a(f"""s_add_u32 s{T0}, s{T2}, {j}
        s_and_b32 s{T0}, s{T0}, 3
        s_lshl1_add_u32 s{T1}, s{T0}, s{S_IDX}
        s_lshl_b32 s{S_TO+j}, s{T1}, 10
        s_and_b32 s{T1}, s{T0}, 1
        s_lshl1_add_u32 s{T1}, s{T1}, s{S_I}""")
        if j < 2:
            a(f"""s_add_u32 s{S_THH+j}, s{T1}, 12
            s_lshl_b32 s{S_THH+j}, s{S_THH+j}, 10""")
        a(f"""s_lshr_b32 s{T0}, s{T0}, 1
        s_lshl4_add_u32 s{T1}, s{T0}, s{T1}
        s_lshl_b32 s{S_TH+j}, s{T1}, 10""")

def step_info(d):
    if d < 12: return (S_TH + d % 4, (d//4)*4096, (d//4)*65536, R_W2)
    if d < 14: return (S_THH + d - 12, 0, 0, R_W2)
    return (S_TO + d - 14, 112*1024, 0, R_WO)

def g2_body(a, typ):
    NT = 14 if typ == 'F' else 12
    last = P.lastF if typ == 'F' else P.lastA
    SRES = S_STRIDE
    regsteps = [0, 1] + list(range(6, 13))
    def breg(d): return B2R + 16*regsteps.index(d)
    order = P.border or (regsteps + [2, 3, 4, 5, 17])
    xo = [d for d in order if d < 17]
    assert sorted(xo[:9]) == regsteps and sorted(order) == list(range(13)) + [17]
    slot = {d: k % 4 for k, d in enumerate(xo)}
    for d in range(13, 17): slot[d] = slot[d - 11]
    slot[17] = 4
    TRX = [0, 3, 4, 7]; TRM = [B2R + 32 + k for k in range(4)]
    nbar = [0]; nvm = [0]; defer = []
    lastrd = {}; owner = {}
    def flush(pred):
        idx = [k for k, d in enumerate(defer) if pred(d)]
        if idx:
            for d in defer[:idx[-1]+1]: b2rd(d[1], breg(d[1]))
            del defer[:idx[-1]+1]
    def vm(text, thr=True):
        if thr:
            flush(lambda d: d[0] <= nvm[0])
            a(f"@throttle {P.maxout}")
        a(text); nvm[0] += 1
    def wtile(t):
        half = t >= 12
        un, tau = (3, t - 12) if half else (t//4, t % 4)
        assert t < NRING or nbar[0] > t - 3, (t, nbar)
        stamp(a, f'g2_w{t}')
        a(f"""s_add_u32 m0, s{S_LW}, {(t % NRING)*16384}
        s_add_u32 s{T1}, s{S_CB+un}, s{S_RB+(4 if half else 0)+tau}""")
        for q in range(4):
            vm(f"buffer_load_dwordx4 v{(WV_H if half else WV_F)+q}, s[{R_W}:{R_W+3}], s{T1} offen offset:{q*1024} lds ; @tag w{t}")
    def b2dma(d, hf, thr=True):
        sl = slot[d]
        if hf == 0:
            if sl in owner: flush(lambda x: x[1] == owner[sl])
            if sl in lastrd: a(f"@wait_lgkm {lastrd[sl]}")
            owner[sl] = d
        tb, _, c2, R = step_info(d)
        if sl == 4:
            assert typ == 'F' or nbar[0] > 10
            a(f"s_add_u32 m0, s{S_LW}, {MISC - RING + hf*2048}")
        else: a(f"s_add_u32 m0, s{S_LX}, {sl*4096 + hf*2048}")
        a(f"s_lshl4_add_u32 s{T1}, s{tb}, {c2 + hf*16384}")
        for q in range(2):
            if P.nob2 and thr: continue
            vm(f"buffer_load_dwordx4 v{1+q}, s[{R}:{R+3}], s{T1} offen offset:{q*1024} lds ; @tag b{d}", thr)
        if hf == 1 and d in regsteps: defer.append((nvm[0] + P.maxout, d))
    def b2rd(d, dst, rds=range(8)):
        sl = slot[d]; o = (sl % 4)*4096
        a(f"@wait_vm b{d}")
        for r in rds:
            ad = (TRX if sl < 4 else TRM)[r >> 1]
            a(f"ds_read_b64_tr_b16 {vr(dst+2*r,2)}, v{ad} offset:{o+1024*(r&1)} ; @tag r{d}")
        lastrd[sl] = f"r{d}"
    prog = (P.progF if typ == 'F' else P.progA).replace(' ', '')
    assert prog.count('W') == NT and prog.count('B') == 28 and prog.count('|') == 1 and prog.count('P') == 1 \
        and prog.count('.') == last + 1 and prog.index('P') > prog.rindex('W'), prog
    nw = nb = 0; bar = False
    for c in prog:
        if c == 'W':
            assert bar or nw == 0
            wtile(nw); nw += 1
        elif c == 'B':
            assert bar
            b2dma(order[nb//2], nb & 1); nb += 1
        elif c == 'D':
            vm(f"global_load_dword v{DUM+2}, {vr(DUM,2)}, off")
        elif c == '|':
            a("s_barrier"); bar = True
            a(nonce_load())
        elif c == '.':
            k = nbar[0]
            need = k if k < last else NT - 1
            assert nw > need
            a(f"@wait_vm w{need}")
            if k == 0: a(nonce_check())
            stamp(a, f'g2_e{k}')
            a("s_barrier")
            stamp(a, f'g2_t{k}')
            nbar[0] += 1
        elif c == 'P': a(poll_load(S_POLL, 4, S_FH, 0))
        else: raise ValueError(c)
    flush(lambda d: True)
    stamp(a, 'g2_p1end')
    if P.prio_g2b != P.prio_g2: a(f"s_setprio {P.prio_g2b}")
    minis = [(d, g) for d in range(14) for g in range(4)] + [(d, g) for g in (3, 2, 1, 0) for d in range(14, 18)]
    NM = len(minis); NB = 2*P.RD
    bbuf = {d: breg(d) for d in regsteps}
    for d in (2, 3, 4, 5): bbuf[d] = B2R + 16*(d & 1)
    bbuf.update({13: B2R, 14: B2R + 16, 15: breg(8), 16: breg(9), 17: breg(10)})
    stage = {0: 0, 16: 1, 32: 2, 48: 3, 56: 4}
    iss = {}; lo = -1
    for m in range(NM):
        lo = max(lo, P.hold.get(m, -1)); iss[m] = max(m - NB, lo, -1)
    pollat = {}
    for (m, k), prev in zip(list(stage.items())[1:], stage): pollat[max(iss[m] - 2*P.pa, iss[prev])] = k
    cur = {}
    def a2pre(m):
        d, g = minis[m]
        if m in stage:
            stamp(a, f'g2_pre{m//2}')
            a(poll_check(S_POLL, 4, S_FH, 16*stage[m]))
            stamp(a, f'g2_c{m//2}')
            adj = {0: 0, 16: 4096, 32: 4096, 48: -8192, 56: 112*1024}[m]
            for k in range(2):
                if adj: a(f"s_add_i32 s{S_TB+k}, s{S_TB+k}, {adj}")
        if cur.get('k') != (d, g >> 1):
            a(f"s_add_u32 s{S_SO}, s{step_info(d)[0]}, s{S_TB+(g>>1)}"); cur['k'] = (d, g >> 1)
    def a2ld(m):
        a(f"buffer_load_dwordx4 {vr(A2R+4*(m%NB),4)}, v{5+(minis[m][1]&1)}, s[{R_WS}:{R_WS+3}], s{S_SO} offen sc1")
    def after(t, part):
        ms = [m for m in range(NM) if iss[m] == t]
        if part == 0:
            if ms: a2pre(ms[0])
        else:
            for n, m in enumerate(ms):
                if n: a2pre(m)
                a2ld(m)
            if t in pollat: a(poll_load(S_POLL, 4, S_FH, 16*pollat[t]))
    after(-1, 0); after(-1, 1)
    XA = B2R + 36; XR = B2R + 40; UU = B2R + 48; RA = breg(11)
    extra = {}
    def put(m, k, txt): extra.setdefault((m, k), []).append(txt)
    gaps = [(m, k) for m in range(NM) for k in (1, 2, 3)]
    for d in (2, 3, 4, 5):
        for r in range(8): put(*gaps[12*(d-1) + r], ('rd', d, (r,)))
    for n, d in enumerate((13, 14, 15, 16, 17)):
        for r in range(8): put(24 + 6*n + (0, 0, 1, 2, 3, 3, 4, 5)[r], (1, 2, 1, 1, 1, 2, 1, 1)[r], ('rd', d, (r,)))
    for d in range(2, 6):
        for h in range(2): put(4*d + 2 + h, 3, ('dma', d + 11, h))
    put(28, 2, f"""v_mbcnt_lo_u32_b32 v{XA+1}, -1, 0
        v_mbcnt_hi_u32_b32 v{XA+1}, -1, v{XA+1}""")
    put(29, 2, f"""v_and_b32 v{XA}, 15, v{XA+1}
        v_lshlrev_b32 v{XA}, 10, v{XA}""")
    put(31, 2, f"""v_bfe_u32 v{XA+2}, v{XA+1}, 4, 1
        v_lshl_add_u32 v{XA}, v{XA+2}, 5, v{XA}""")
    put(32, 2, f"""v_lshrrev_b32 v{XA+2}, 5, v{XA+1}
        v_lshl_add_u32 v{XA}, v{XA+2}, 4, v{XA}""")
    put(34, 2, f"""v_lshlrev_b32 v{XA+1}, 4, v{XA+1}
        v_add_u32 v{XA+2}, s{S_LX}, v{XA+1}""")
    put(35, 2, f"""s_sub_u32 s{T0}, s{S_LW}, s{S_LX}
        s_add_u32 s{T0}, s{T0}, {MISC-RING}""")
    for k in range(4): put(37 + k//2, 2, f"v_add_u32 v{TRM[k]}, s{T0}, v{TRX[k]}")
    put(P.resat, 3, f"""buffer_load_dwordx4 {vr(XR,4)}, v{XA}, s[{R_X}:{R_X+3}], s{SRES} offen
        buffer_load_dwordx4 {vr(XR+4,4)}, v{XA}, s[{R_X}:{R_X+3}], s{SRES} offen offset:64""")
    put(56, 2, f"""s_mov_b32 s{T0}, {hx(-LN2)}
        s_mov_b32 s{T1}, 0xffff0000""")
    for g in range(1, 4):
        put(56 + g, 2, f"""s_xor_b32 s{T2}, s{S_WV}, {g}
        s_lshl_b32 s{T2}, s{T2}, 14
        v_add_u32 v{RA+g}, s{T2}, v{XA+1}""")
    for g in (3, 2, 1):
        m0 = 56 + 4*(4 - g)
        for cb in range(4):
            put(m0 + (cb >> 1), 2 + (cb & 1), f"ds_write_b128 v{XA+2}, {vr(AC2+16*g+4*(3-cb),4)} offset:{(g-1)*4096+(3-cb)*1024}")
    sw = [f"v_permlane16_swap_b32 v{XR+4*p+k}, v{XR+4*p+2+k}" for p in range(2) for k in range(2)]
    un = [f"v_lshlrev_b32 v{UU+2*k}, 16, v{XR+k}\nv_and_b32 v{UU+2*k+1}, s{T1}, v{XR+k}" for k in range(8)]
    put(62, 1, "\n".join(sw[:2])); put(62, 3, "\n".join(sw[2:]))
    for k in range(8): put((63, 66, 67)[k//3], 1 + k % 3, un[k])
    PR = [None, A2R, A2R + 16, B2R + 16]
    bar_at = P.barat
    for m, (d, g) in enumerate(minis):
        if m % 2 == 0: stamp(a, f'g2_s{m//2}')
        if m == bar_at:
            stamp(a, 'g2_tb')
            a("s_waitcnt lgkmcnt(0)\ns_barrier")
            stamp(a, 'g2_ta')
            for cb in range(4):
                for gg in (1, 2, 3): a(f"ds_read_b128 {vr(AC2+16*gg+4*cb,4)}, v{RA+gg} offset:{(gg-1)*4096+cb*1024}")
        for k in range(4):
            cb = k if m % 2 == 0 else 3 - k
            acc = AC2 + 16*g + 4*cb
            a(f"{M16} {vr(acc,4)}, {vr(bbuf[d]+4*cb,4)}, {vr(A2R+4*(m%NB),4)}, {'0' if d == 0 else vr(acc,4)}")
            for it in extra.get((m, k), []):
                if isinstance(it, str): a(it)
                elif it[0] == 'rd': b2rd(it[1], bbuf[it[1]], it[2])
                else: b2dma(it[1], it[2], thr=False)
            if P.split:
                if k == 3: after(m, 0)
                if k == P.split - 1 and m: after(m - 1, 1)
        if not P.split: after(m, 0); after(m, 1)
    stamp(a, 'g2_mend')
    if bar_at >= NM:
        a("s_waitcnt lgkmcnt(0)\ns_barrier")
        for cb in range(4):
            for gg in (1, 2, 3): a(f"ds_read_b128 {vr(AC2+16*gg+4*cb,4)}, v{RA+gg} offset:{(gg-1)*4096+cb*1024}")
    for p in range(2):
        for cb in (2*p, 2*p+1):
            for gg in (1, 2, 3, 0):
                for e in range(4): a(f"v_fmac_f32 v{UU+4*cb+e}, s{T0}, v{AC2+16*gg+4*cb+e}")
        for k in range(4): a(f"v_cvt_pk_bf16_f32 v{XR+4*p+k}, v{UU+8*p+2*k}, v{UU+8*p+2*k+1}")
        a(sw[2*p]); a(sw[2*p+1])
        a(f"buffer_store_dwordx4 {vr(XR+4*p,4)}, v{XA}, s[{R_OUT}:{R_OUT+3}], s{SRES} offen offset:{64*p} {P.oflag}")
    stamp(a, 'g2_end')
    stamp_out(a, 1)
    a("s_endpgm")

def kernel():
    U.n = 0
    a = Asm()
    prologue(a)
    g1_start(a)
    g1_f(a)
    g1_a(a)
    g2_setup(a)
    a(f"""s_cmp_eq_u32 s{S_TYPE}, 0
    s_cbranch_scc1 G2_A
    @save g2""")
    g2_body(a, 'F')
    a("G2_A:")
    a("@restore g2")
    g2_body(a, 'A')
    a("K_END:")
    a("s_endpgm")
    return a.finish()

def build():
    kn = NAME + "_kernel"
    s = HEADER
    s += "; @launch grid=(256,1,1) block=(512,1,1) lds=163840\n"
    s += '.amdgcn_target "amdgcn-amd-amdhsa--gfx950"\n.text\n'
    if P.pad is not None: s += f".p2align 10\n.fill {P.pad//4}, 4, 0xbf800000\n"
    s += entry(kn) + kernel()
    s += f"K_LAST:\n.set CODE_BYTES, K_LAST-{kn}\n"
    s += '.section .rodata,"a"\n.p2align 6\n' + kd(kn)
    return s
if __name__ == "__main__":
    for kv in sys.argv[2:]:
        k, v = kv.split("=", 1)
        assert hasattr(P, k), k
        setattr(P, k, eval(v))
    txt = build()
    open(sys.argv[1], "w").write(txt)
```

```python
import sys
from asmlib import Asm
from common import *

class P:
    stamp = False
    clk = 's_memrealtime'
    LA = 5; NWF = 6
    maxout = 8
    RD = 5
    pa = 4
    prio_g1 = 1; prio_tail = 3; prio_g2 = 0; prio_g2b = 0
    spin = 1 << 22
    pub_delay = 24; kv_delay = 20
    kvpoll = (-8, 3)
    e2frac = 8
    xla = 4
    cluster = True
    lastF = 12; lastA = 10
    mapn = 0
    ntx = 6
    sm_g2 = [[], [], [], []]
    sm_g1 = {}
    hi0 = 128; hi1 = 176
    hold = {}
    dlines = (48, 56, 56, 16)
    dskip = (0, 0)
    lag = 0; dpos = 5
    fh = 7; fk = 7; touch = False
    perm = (0x76541032, 0x76325410, 0x54763210, 0x76543210)
    nostats = False
    wrot = 's_lshl2_add_u32 s{R}, s{r}, s{s}'
    brot = (1, 2)
    split = 1; barat = 71; resat = 44
    pad = 256
    oflag = ''
    border = None
    progF = '|WWWWW . BBB . BBB . WB . WB . WBB . WBB . WBB . WBB . WBB . WBB . WBB . BBBP . BBB'
    progA = '|WWWWW . BBB . BBB . WB . WB . WBB . WBB . WBB . WBB . WBBB . BBBB . BPBBBB'
    thr2 = 9; thr2_until = 0
    sleep = 1
    nopoll = False; nob2 = False; hstore = 'sc1'
    st1 = ['g1_x0', 'g1_xdone', 'g1_ln', 'g1_u0', 'g1_u1', 'g1_u2', 'g1_7', 'g1_9', 'g1_11']
    st2 = ['g2_setup', 'g2_e0', 'g2_p1end', 'g2_s1', 'g2_c8', 'g2_c16', 'g2_c28', 'g2_mend', 'g2_end']

TBS = 144*1024
KV_OFF = 64*TBS; KV_SLOT = 4352
FL_H = KV_OFF + 128*KV_SLOT
FL_KV = FL_H + 65536 + 128
EPOCH = FL_KV + 65536
WS_USED = EPOCH + 128
TS_OFF = 128 << 20
RING = 0x10000; NRING = 5; MISC = 0x24000
AFR = RING + 2*16384; AFL = AFR + 4096
MF = "v_mfma_f32_32x32x16_bf16"
S_X, S_WQKV, S_WO, S_W1, S_W2, S_OUT, S_DBG, S_WS = 4, 6, 8, 12, 14, 16, 18, 20
R_X, R_W, R_WS, R_W2, R_WO, R_OUT = 24, 28, 32, 36, 40, 44
S_BUD, S_WV, S_I, S_IDX, S_TYPE, S_ROT, S_STRIDE, S_T, S_NONCE = 0, 3, 22, 23, 48, 49, 50, 51, 52
T0, T1, T2 = 54, 55, 1
S_PERM = 75

def srd(a, d, base, size):
    a(f"""s_mov_b64 s[{d}:{d+1}], s[{base}:{base+1}]
    s_mov_b32 s{d+2}, {size}
    s_mov_b32 s{d+3}, 0x20000""")

NST = 10
S_DUM = 100
def stamp(a, name):
    if not P.stamp or P.stamp == 'lite': return
    for lst in (P.st1, P.st2):
        if name in lst:
            n = lst.index(name) + 1
            a(f"{P.clk} s[{78+2*n}:{79+2*n}]")
def stamp_init(a):
    if not P.stamp: return
    a("s_memrealtime s[76:77]")
    if P.stamp == 'lite': return
    a(f"{P.clk} s[78:79]")
    for n in range(1, NST): a(f"s_mov_b32 s{78+2*n}, 0")
def stamp_out(a, role):
    if not P.stamp or (P.stamp == 'lite' and role == 0): return
    a(f"""s_waitcnt vmcnt(0) lgkmcnt(0)
    {P.clk} s[56:57]
    s_memrealtime s[58:59]
    s_lshl_b32 s{T0}, s2, 3
    s_add_u32 s{T0}, s{T0}, s{S_WV}
    s_add_u32 s{T0}, s{T0}, {4*role}
    s_lshl_b32 s{T0}, s{T0}, 6
    s_add_u32 s{T0}, s{T0}, {TS_OFF}
    v_mov_b32 v1, s{T0}
    s_waitcnt lgkmcnt(0)""")
    srcs = [f"s{78+2*n}" for n in range(NST)] + ["0", "0", "0", "s56", "s58", "s76"]
    for n, s in enumerate(srcs):
        if P.stamp == 'lite' and n < 14: continue
        a(f"v_mov_b32 v2, {s}")
        a(f"global_store_dword v1, v2, s[{S_WS}:{S_WS+1}] offset:{4*n}")

class U: n = 0
def uid():
    U.n += 1; return U.n

def budget(n):
    return f"""s_sub_u32 s{S_BUD}, s{S_BUD}, {n}
    s_cmp_lt_i32 s{S_BUD}, 0"""

def nonce_load():
    return f"s_load_dwordx2 s[{S_NONCE}:{S_NONCE+1}], s[{S_DBG}:{S_DBG+1}], 0"
def nonce_check():
    n = uid()
    return f"""RE{n}:
    s_waitcnt lgkmcnt(0)
    s_cmp_lg_u32 s{S_NONCE+1}, 0
    s_cbranch_scc1 OK{n}
    s_sleep 4
    s_load_dwordx2 s[{S_NONCE}:{S_NONCE+1}], s[{S_DBG}:{S_DBG+1}], 0 glc
    {budget(16)}
    s_cbranch_scc0 RE{n}
    s_waitcnt lgkmcnt(0)
    OK{n}:
    s_mov_b32 s{S_NONCE+1}, s{S_NONCE}"""
def flag_set(base, off):
    return f"s_atomic_swap s{S_NONCE}, s[{base}:{base+1}], {off}"
def poll_load(dst, nw, base, off):
    if P.nopoll: return ""
    return f"s_load_dwordx{nw} s[{dst}:{dst+nw-1}], s[{base}:{base+1}], {off} glc"
def poll_check(dst, nw, base, off):
    if P.nopoll: return ""
    n = uid()
    NP = f"s[{S_NONCE}:{S_NONCE+1}]"
    t = [f"s_xor_b64 s[{dst+2*k}:{dst+2*k+1}], s[{dst+2*k}:{dst+2*k+1}], {NP}" for k in range(nw//2)]
    t += [f"s_or_b64 s[{dst}:{dst+1}], s[{dst}:{dst+1}], s[{dst+2*k}:{dst+2*k+1}]" for k in range(1, nw//2)]
    t = "\n".join(t)
    return f"""RE{n}:
    s_waitcnt lgkmcnt(0)
    {t}
    s_cbranch_scc0 OK{n}
    {f's_sleep {P.sleep}' if P.sleep else ''}
    {poll_load(dst, nw, base, off)}
    {budget(16)}
    s_cbranch_scc0 RE{n}
    s_waitcnt lgkmcnt(0)
    OK{n}:"""
def lds_wait(vd, vaddr, val):
    n = uid()
    return f"""RE{n}:
    ds_read_b32 v{vd}, v{vaddr}
    {budget(1)}
    s_cbranch_scc1 OK{n}
    s_waitcnt lgkmcnt(0)
    v_cmp_gt_u32 vcc, {val}, v{vd}
    s_cbranch_vccnz RE{n}
    OK{n}:"""

def cost(t):
    op = t.split()[0]
    if op.startswith('@') or op.endswith(':'): return 0
    if op.startswith(('v_exp', 'v_rcp', 'v_rsq')): return 8
    if op.startswith('v_mfma'): return 32
    if op.startswith(('buffer_', 'global_')): return 12
    if op.startswith('ds_'): return 8
    return 4
def gcost(it): return sum(cost(l.strip()) for l in it.split('\n') if l.strip())
def spread(fill, items, lo, hi):
    tot = sum(gcost(it) for it in items); acc = 0; n = hi - lo
    for it in items:
        c = gcost(it)
        fill.setdefault(lo + min(n - 1, int((acc + c/2) * n / max(tot, 1))), []).append(it)
        acc += c

def decode(a):
    a(f"""s_lshr_b32 s{S_IDX}, s{S_T}, 2
    s_lshr_b32 s{S_TYPE}, s{S_IDX}, 2
    s_and_b32 s{S_IDX}, s{S_IDX}, 3
    s_bfe_u32 s{T1}, s2, {0x10000 if P.mapn else 0x10002}
    s_lshl2_add_u32 s{S_IDX}, s{T1}, s{S_IDX}
    s_and_b32 s{T1}, s{S_T}, 3
    s_mov_b32 s{S_PERM}, {P.perm[0]}""")
    for r in range(1, 4):
        a(f"""s_cmp_eq_u32 s{T1}, {r}
        s_cselect_b32 s{S_PERM}, {P.perm[r]}, s{S_PERM}""")
def chunk(dst, c):
    if isinstance(c, int): t = f"s_lshr_b32 s{dst}, s{S_PERM}, {4*c}"
    else: t = f"s_lshr_b32 s{dst}, s{S_PERM}, s{c[1]}"
    return t + f"\ns_add_u32 s{dst}, s{dst}, s{S_ROT}\ns_and_b32 s{dst}, s{dst}, 7"

def prologue(a):
    a(f"""s_load_dwordx16 s[4:19], s[0:1], 0
    s_load_dwordx2 s[20:21], s[0:1], 64
    s_cmp_ge_u32 s2, 256
    s_cbranch_scc1 K_END""")
    stamp_init(a)
    a(f"""s_getpc_b64 s[24:25]
    v_lshrrev_b32 v3, 5, v0
    s_lshr_b32 s{S_T}, s2, 3
    v_lshlrev_b32 v2, 7, v3
    v_lshl_add_u32 v2, s{S_T}, 11, v2
    v_min_u32 v2, CODE_BYTES-256, v2
    global_load_dword v47, v2, s[24:25]
    v_lshrrev_b32 v3, 6, v0
    v_and_b32 v0, 63, v0
    v_readfirstlane_b32 s{S_TYPE}, v3
    s_bfe_u32 s{S_ROT}, s2, {0x20001 if P.mapn else 0x20000}
    s_and_b32 s{T1}, s{S_T}, 3
    s_lshl2_add_u32 s{S_I}, s{S_ROT}, s{T1}
    s_lshr_b32 s{T0}, s{S_T}, 2
    s_lshl1_add_u32 s{S_ROT}, s{S_ROT}, s{T0}
    s_cmp_eq_u32 s{T1}, 0
    s_cselect_b32 s{S_PERM}, {P.perm[0] & 15}, {P.perm[1] & 15}
    s_and_b32 s{S_WV}, s{S_TYPE}, 3
    v_lshrrev_b32 v1, 3, v0
    v_and_b32 v2, 7, v0
    v_lshrrev_b32 v4, 4, v0
    s_cmp_ge_u32 s{S_TYPE}, 4
    s_cbranch_scc1 G2_START
    @save top""")

X = 128; ACC = [64, 96]; WF = 40; PK = 24; TMP = 12
S_XROW, S_XLDS, S_XCH, S_A2B, S_COL0, S_C1, S_C2, S_ST, S_XLD2 = 56, 57, 58, 59, 60, 64, 65, 66, 67
S_MASK, S_FLA, S_KVF, S_KVW = 68, 70, 72, 44

def g1_start(a):
    XV = 64; XA = 68; ST = 76
    a(f"""v_xor_b32 v5, v2, v4
    v_lshlrev_b32 v5, 4, v5
    v_lshl_add_u32 v{XV}, v1, 10, v5
    v_xor_b32 v{XV+1}, 64, v{XV}
    v_add_u32 v{XV+1}, 7168, v{XV+1}
    v_add_u32 v{XV+2}, 14336, v{XV}
    v_add_u32 v{XV+3}, 14336, v{XV+1}
    s_lshl2_add_u32 s{T0}, s{S_I}, s{S_WV}
    s_lshl_b32 s{S_XROW}, s{T0}, 15
    s_lshl_b32 s{S_XLDS}, s{S_WV}, 14
    s_add_u32 s{S_XCH}, s{S_ROT}, s{S_PERM}
    s_and_b32 s{S_XCH}, s{S_XCH}, 7
    s_lshl_b32 s{S_XCH}, s{S_XCH}, 7
    s_mov_b32 s{R_X+2}, {2048*1024}
    s_mov_b32 s{R_X+3}, 0x20000
    s_mov_b32 m0, s{S_XLDS}
    s_add_u32 s{T1}, s{S_XROW}, s{S_XCH}
    s_waitcnt lgkmcnt(0)
    s_mov_b64 s[{R_X}:{R_X+1}], s[{S_X}:{S_X+1}]""")
    def xdma(c):
        if c:
            if c & 1: a(f"s_add_u32 s{S_XCH}, s{S_XCH}, 128\ns_and_b32 s{S_XCH}, s{S_XCH}, 1023")
            else: a(chunk(S_XCH, c) + f"\ns_lshl_b32 s{S_XCH}, s{S_XCH}, 7")
            a(f"""s_add_u32 m0, s{S_XLDS if c < 4 else S_XLD2}, {(c&3)*4096}
            s_add_u32 s{T1}, s{S_XROW}, s{S_XCH}""")
        for q in range(4):
            a(f"buffer_load_dwordx4 v{XV+q}, s[{R_X}:{R_X+3}], s{T1} offen offset:{q*1024} lds ; @tag x{c}")
    xdma(0)
    stamp(a, 'g1_karg')
    xdma(1)
    if P.prio_g1: a(f"s_setprio {P.prio_g1}")
    a(f"""s_add_u32 s44, s{S_WS}, {EPOCH}
    s_addc_u32 s45, s{S_WS+1}, 0
    s_or_b32 s46, s2, s{S_WV}
    s_cbranch_scc1 G1_NOEP
    s_load_dword s{S_NONCE}, s[44:45], 0 glc
    G1_NOEP:""")
    decode(a)
    srd(a, R_WS, S_WS, WS_USED)
    a(f"""s_mov_b32 s{S_BUD}, {P.spin}
    s_add_u32 s{S_XLD2}, s{S_XLDS}, {RING+16384}
    s_mul_i32 s{S_A2B}, s{T0}, {TBS}
    s_lshr_b32 s{T1}, s{T0}, 1
    s_lshr_b32 s{T2}, s{S_IDX}, 1
    s_lshl2_add_u32 s{T1}, s{T1}, s{T2}
    s_lshl_b32 s{T1}, s{T1}, {P.fh}
    s_and_b32 s{T0}, s{T0}, 1
    s_and_b32 s{T2}, s{S_IDX}, 1
    s_lshl1_add_u32 s{T0}, s{T2}, s{T0}
    s_lshl2_add_u32 s{T0}, s{T0}, s{T1}
    s_add_u32 s{T0}, s{T0}, {FL_H}
    s_add_u32 s{S_FLA}, s{S_WS}, s{T0}
    s_addc_u32 s{S_FLA+1}, s{S_WS+1}, 0""")
    a(f"""v_and_b32 v6, 31, v0
    v_lshrrev_b32 v7, 5, v0
    v_bfe_u32 v8, v0, 1, 3
    v_lshlrev_b32 v9, 7, v6
    v_add_u32 v9, s{S_XLDS}, v9""")
    for t in range(4):
        a(f"""v_add_u32 v10, {2*t}, v7
        v_xor_b32 v10, v10, v8
        v_lshl_add_u32 v{XA+t}, v10, 4, v9
        v_add_u32 v{XA+4+t}, {RING+16384}, v{XA+t}""")
    a(f"""v_bfe_u32 v8, v0, 2, 2
    v_lshl_add_u32 v9, v7, 3, v8
    v_and_b32 v10, 1, v4
    v_and_b32 v11, 3, v0
    v_lshlrev_b32 v10, 5, v10
    v_lshl_add_u32 v10, v11, 3, v10
    v_lshl_add_u32 v6, v9, 6, v10
    v_add_u32 v6, {RING}, v6
    v_lshrrev_b32 v8, 1, v8
    v_lshlrev_b32 v8, 6, v8
    v_xor_b32 v10, v10, v8
    v_lshl_add_u32 v2, v9, 7, v10
    v_add_u32 v2, {RING}, v2
    v_xor_b32 v3, 64, v2
    v_add_u32 v4, 0x10000, v2
    v_add_u32 v5, 0x10000, v3
    v_lshlrev_b32 v1, 4, v0
    s_mov_b32 s{S_C1}, 0x3f803f80""")
    for e in range(4): a(f"v_mov_b32 v{ST+e}, 0")
    DV = 80
    a(f"""s_cmp_eq_u32 s{S_TYPE}, 0
    s_movk_i32 s{T2}, 3072
    s_cselect_b32 s{S_STRIDE}, s{T2}, 3584
    s_cselect_b64 s[36:37], s[{S_WQKV}:{S_WQKV+1}], s[{S_W1}:{S_W1+1}]
    s_cselect_b32 s38, 10, 7
    s_cselect_b32 s39, 2, 3
    s_movk_i32 s{T2}, 128
    s_cselect_b32 s{T2}, s{T2}, 448
    s_mul_i32 s{T2}, s{T2}, s{S_IDX}
    s_lshr_b32 s{T0}, s{S_T}, 2
    s_lshl1_add_u32 s{T0}, s{T0}, s{S_I}
    s_lshl2_add_u32 s{T0}, s{T0}, s{S_WV}
    s_and_b32 s{T0}, s{T0}, 63
    s_lshl_b32 s{T0}, s{T0}, 3
    v_and_b32 v8, 7, v0
    v_add_u32 v8, s{T0}, v8
    v_mul_u32_u24 v8, s{S_STRIDE}, v8
    v_bfe_u32 v9, v0, 3, 2
    v_min_u32 v9, s39, v9
    v_lshlrev_b32 v9, s38, v9
    v_add3_u32 v8, v8, v9, s{T2}
    v_mov_b32 v{DV+1}, s37
    v_add_co_u32 v{DV}, vcc, s36, v8
    v_addc_co_u32 v{DV+1}, vcc, 0, v{DV+1}, vcc
    s_lshl2_add_u32 s{T0}, s2, s{S_WV}
    s_mul_i32 s{T1}, s{T0}, 14
    v_and_b32 v8, 15, v0
    v_min_u32 v8, 13, v8
    v_add_lshl_u32 v8, v8, s{T1}, 7
    v_mov_b32 v{DV+3}, s{S_W2+1}
    v_add_co_u32 v{DV+2}, vcc, s{S_W2}, v8
    v_addc_co_u32 v{DV+3}, vcc, 0, v{DV+3}, vcc
    v_cmp_gt_u32 vcc, 32, v0
    v_cndmask_b32 v{DV}, v{DV+2}, v{DV}, vcc
    v_cndmask_b32 v{DV+1}, v{DV+3}, v{DV+1}, vcc
    s_lshl_b32 s{T1}, s{T0}, 2
    v_add_lshl_u32 v8, v11, s{T1}, 7
    v_mov_b32 v{DV+3}, s{S_WO+1}
    v_add_co_u32 v{DV+2}, vcc, s{S_WO}, v8
    v_addc_co_u32 v{DV+3}, vcc, 0, v{DV+3}, vcc
    v_cmp_gt_u32 vcc, 48, v0
    v_cndmask_b32 v{DV}, v{DV+2}, v{DV}, vcc
    v_cndmask_b32 v{DV+1}, v{DV+3}, v{DV+1}, vcc""")
    for c in range(2, P.xla): xdma(c)
    def stats(c):
        if P.nostats: return
        for d in range(16):
            r = X+16*c+d
            a(f"v_dot2_f32_bf16 v{ST+(d&1)}, v{r}, s{S_C1}, v{ST+(d&1)}")
            a(f"v_dot2_f32_bf16 v{ST+2+(d&1)}, v{r}, v{r}, v{ST+2+(d&1)}")
    for c in range(8):
        a(f"@wait_vm x{c}")
        stamp(a, f'g1_x{c}')
        for t in range(4):
            a(f"ds_read_b128 {vr(X+16*c+4*t,4)}, v{XA+t+(4 if c >= 4 else 0)} offset:{(c&3)*4096}")
        if c + P.xla < 8:
            xdma(c + P.xla)
        if c == P.dpos: a(f"global_load_dword v23, {vr(DV,2)}, off")
        if c == 1:
            a(f"""s_cmp_lg_u32 s46, 0
            s_cbranch_scc1 G1_NONONCE
            @off
            s_mov_b32 s{S_NONCE+1}, 1
            s_waitcnt lgkmcnt(0)
            s_mul_i32 s{S_NONCE}, s{S_NONCE}, 1664525
            s_add_u32 s{S_NONCE}, s{S_NONCE}, 1013904223
            s_atomic_swap_x2 s[{S_NONCE}:{S_NONCE+1}], s[{S_DBG}:{S_DBG+1}], 0
            s_atomic_swap s{S_NONCE}, s[44:45], 0
            @on
            G1_NONONCE:""")
        if P.lag and c: stats(c - 1)
        if not P.lag and c < 7: stats(c)
    a("@wait_lgkm xr")
    a("s_barrier")
    stats(7)
    stamp(a, 'g1_xdone')
    a(f"""v_add_f32 v10, v{ST}, v{ST+1}
    v_add_f32 v8, v{ST+2}, v{ST+3}
    v_mov_b32 v11, v10
    v_mov_b32 v9, v8
    s_cmp_eq_u32 s{S_TYPE}, 0
    s_mov_b32 s{T0}, {hx(LOG2E)}
    v_permlane32_swap_b32 v10, v11
    v_permlane32_swap_b32 v8, v9
    s_cselect_b32 s{T0}, s{T0}, {hx(-LOG2E)}
    v_add_f32 v10, v10, v11
    v_add_f32 v8, v8, v9
    v_mul_f32 v10, {hx(1/512)}, v10
    v_mul_f32 v8, {hx(1/512)}, v8
    v_fma_f32 v8, -v10, v10, v8
    v_max_f32 v8, 0, v8
    v_add_f32 v8, {hx(1e-5)}, v8
    v_rsq_f32 v8, v8
    s_mov_b32 s{S_C2}, 0xffff0000
    v_mul_f32 v8, s{T0}, v8
    v_mul_f32 v10, -v10, v8
    v_mov_b32 v9, v8
    v_mov_b32 v11, v10""")
    for ks in range(32):
        if ks == 15: a(nonce_load())
        for d in range(4):
            r = X+4*ks+d; t = TMP + 2*d
            a(f"v_lshlrev_b32 v{t}, 16, v{r}")
            a(f"v_and_b32 v{t+1}, s{S_C2}, v{r}")
        for d in range(4):
            t = TMP + 2*d
            a(f"v_pk_fma_f32 {vr(t,2)}, {vr(t,2)}, v[8:9], v[10:11]")
        for d in range(4):
            t = TMP + 2*d
            a(f"v_cvt_pk_bf16_f32 v{X+4*ks+d}, v{t}, v{t+1}")
    a(nonce_check())
    stamp(a, 'g1_ln')
    a(f"""s_cmp_eq_u32 s{S_TYPE}, 0
    s_cbranch_scc1 G1_A
    @save g1""")

def g1_main(a, units, fill, lastbar):
    slots = []; tile0 = 0
    for (half, wa, buf) in units:
        for ks in range(32):
            if half: slots.append((tile0 + ks//16, (ks % 16)*1024, 0, True, ACC[buf], ks, wa))
            else:
                for b in range(2): slots.append((tile0 + ks//8, (ks % 8)*2048, b, False, ACC[buf]+16*b, ks, wa))
        tile0 += 2 if half else 4
    def rd(n):
        tile, off, b, half, acc, ks, wa = slots[n]
        if n % 16 == 0 and tile <= lastbar:
            for it in fill.get(('bar', tile), []): a(it)
            stamp(a, f'g1_b{tile}')
            a("s_barrier")
        sl = tile % NRING
        f = WF + 4*(n % P.NWF)
        if half:
            assert sl < 4
            ad = 6; o = sl*16384 + off; o2 = o + 256
        else:
            ad = (2 if sl < 4 else 4) + b; o = (sl % 4)*16384 + off; o2 = o + 512
        a(f"ds_read_b64_tr_b16 {vr(f,2)}, v{ad} offset:{o}")
        a(f"ds_read_b64_tr_b16 {vr(f+2,2)}, v{ad} offset:{o2}")
    for n in range(P.LA): rd(n)
    for n, (tile, off, b, half, acc, ks, wa) in enumerate(slots):
        f = WF + 4*(n % P.NWF)
        A, B = (vr(f,4), vr(X+4*ks,4)) if wa else (vr(X+4*ks,4), vr(f,4))
        a(f"{MF} {vr(acc,16)}, {A}, {B}, {'0' if ks == 0 else vr(acc,16)}")
        if n + P.LA < len(slots): rd(n + P.LA)
        stamp(a, f'g1_m{n}')
        for it in fill.get(n, []): a(it)
        stamp(a, f'g1_n{n}')
        if n % 64 == 63 or n == len(slots) - 1: stamp(a, ['g1_u0','g1_u1','g1_u2','g1_7'][n//64])

def silu_ops(acc, nb, un, O=24):
    T = 12
    out = [f"s_add_u32 s{S_ST}, s{S_A2B}, s{S_COL0+un}"]
    pend = []; late = []
    for p in range(8*nb):
        r0, r1 = acc+2*p, acc+2*p+1
        t0, t1 = T + 2*(p & 1), T + 2*(p & 1) + 1
        out.append(f"v_exp_f32 v{t0}, v{r0}")
        out.extend(pend)
        out += [f"v_exp_f32 v{t1}, v{r1}", f"v_add_f32 v{t0}, 1.0, v{t0}", f"v_rcp_f32 v{t0}, v{t0}",
                f"v_add_f32 v{t1}, 1.0, v{t1}", f"v_rcp_f32 v{t1}, v{t1}", f"v_mul_f32 v{r0}, v{t0}, v{r0}"]
        fr = p//4; o = O + 4*fr
        pend = [f"v_mul_f32 v{r1}, v{t1}, v{r1}", f"v_cvt_pk_bf16_f32 v{o+(p&3)}, v{r0}, v{r1}"]
        if p % 4 == 3 and P.hstore is not None:
            (late if P.cluster else pend).append(
                f"buffer_store_dwordx4 {vr(o,4)}, v1, s[{R_WS}:{R_WS+3}], s{S_ST} offen offset:{fr*1024} {P.hstore}")
    out.extend(pend)
    if late: out.append("\n".join(late))
    return out

def g1_f(a):
    fill = {}
    spread(fill, [f"s_mul_i32 s{T0}, s{S_IDX}, 14\ns_and_b32 s{T1}, s{S_IDX}, 1",
                  f"s_lshl1_add_u32 s{T2}, s{T1}, s{T0}\ns_lshl_b32 s{S_COL0}, s{T2}, 10",
                  f"s_add_u32 s{S_COL0+1}, s{S_COL0}, 4096\ns_add_u32 s{S_COL0+2}, s{S_COL0}, 8192",
                  f"s_cmp_eq_u32 s{T1}, 0\ns_cselect_b32 s{T1}, 12, 0",
                  f"s_add_u32 s{T0}, s{T0}, s{T1}\ns_lshl_b32 s{S_COL0+3}, s{T0}, 10"], 20, 30)
    spread(fill, silu_ops(ACC[0], 2, 0), 66, P.hi0)
    spread(fill, silu_ops(ACC[1], 2, 1), 130, P.hi1)
    ops2 = silu_ops(ACC[0], 2, 2)
    h = len(ops2)*P.e2frac//8
    spread(fill, ops2[:h], 194, 224)
    fill.setdefault(min(P.hi0 - 1 + P.pub_delay, 223), []).append("@wait_vm st0\n" + flag_set(S_FLA, 0))
    fill.setdefault(min(P.hi1 - 1 + P.pub_delay, 223), []).append("@wait_vm st1\n" + flag_set(S_FLA, 16))
    g1_main(a, [(False, True, 0), (False, True, 1), (False, True, 0), (True, True, 1)], fill, P.lastF)
    if P.prio_tail != P.prio_g1: a(f"s_setprio {P.prio_tail}")
    for op in ops2[h:]: a(op)
    for op in silu_ops(ACC[1], 1, 3, O=WF): a(op)
    stamp(a, 'g1_8')
    a("@wait_vm st2"); a(flag_set(S_FLA, 32))
    a("@wait_vm st3"); a(flag_set(S_FLA, 48))
    stamp(a, 'g1_9')
    stamp_out(a, 0)
    a("s_endpgm")

def phi_ops(acc, zacc):
    T = 12; S_C0, S_LN2 = S_COL0, S_COL0+1
    out = []; pend = []
    for p in range(16):
        r0, r1 = acc+2*p, acc+2*p+1
        t0, t1 = T + 2*(p & 1), T + 2*(p & 1) + 1
        out += [f"v_exp_f32 v{t0}, v{r0} clamp", f"v_max_f32 v{r0}, s{S_C0}, v{r0}"]
        out.extend(pend)
        out += [f"v_exp_f32 v{t1}, v{r1} clamp", f"v_max_f32 v{r1}, s{S_C0}, v{r1}",
                f"v_fmac_f32 v{t0}, s{S_LN2}, v{r0}", f"v_fmac_f32 v{t1}, s{S_LN2}, v{r1}"]
        pend = [f"v_cvt_pk_bf16_f32 v{PK+p}, v{t0}, v{t1}"]
        if zacc is not None and p >= 1:
            q = p - 1; z = zacc + q//8
            pend.append(f"v_dot2_f32_bf16 v{z}, v{PK+q}, s{S_C1}, {'0' if q % 8 == 0 else f'v{z}'}")
    out.extend(pend)
    if zacc is not None: out.append(f"v_dot2_f32_bf16 v{zacc+1}, v{PK+15}, s{S_C1}, v{zacc+1}")
    return out

def g1_a(a):
    S_C0, S_LN2, S_KVG, S_KVS = S_COL0, S_COL0+1, S_COL0+2, S_COL0+3
    MASK = f"s[{S_MASK}:{S_MASK+1}]"
    a("G1_A:")
    a("@restore g1")
    fill = {}
    def put(g, ops): fill.setdefault(g, []).extend(ops)
    spread(fill, [f"s_mov_b32 s{S_C0}, {hx(1e-6*LOG2E)}\ns_mov_b32 s{S_LN2}, {hx(LN2)}",
           f"s_mul_i32 s{S_KVG}, s{S_IDX}, {16*KV_SLOT}\ns_add_u32 s{S_KVG}, s{S_KVG}, {KV_OFF}",
           f"s_lshl2_add_u32 s{T0}, s{S_IDX}, s{S_WV}\ns_lshl_b32 s{T0}, s{T0}, {P.fk}",
           f"s_add_u32 s{T0}, s{T0}, {FL_KV}\ns_lshl2_add_u32 s{T1}, s{S_I}, s{T0}",
           f"s_add_u32 s{S_KVF}, s{S_WS}, s{T0}\ns_addc_u32 s{S_KVF+1}, s{S_WS+1}, 0",
           f"s_add_u32 s{S_KVW}, s{S_WS}, s{T1}\ns_addc_u32 s{S_KVW+1}, s{S_WS+1}, 0",
           f"s_mov_b32 s{S_MASK}, 0x0000ffff\ns_mov_b32 s{S_MASK+1}, 0x0000ffff",
           "v_bfe_u32 v8, v0, 4, 1", "v_lshlrev_b32 v8, 10, v8", "v_and_b32 v9, 15, v0", "v_lshl_add_u32 v8, v9, 4, v8",
           "v_lshl_add_u32 v8, v7, 8, v8", f"s_lshl_b32 s{T0}, s{S_WV}, 12\ns_add_u32 s{T0}, s{T0}, {MISC}\nv_add_u32 v8, s{T0}, v8",
           "v_lshlrev_b32 v11, 2, v0", f"v_add_u32 v11, {MISC}, v11", f"s_lshl_b32 s{T0}, s{S_WV}, 8\nv_add_u32 v9, s{T0}, v11",
           f"s_lshl_b32 s{T0}, s{S_WV}, 10\ns_add_u32 s{T1}, s{T0}, {MISC}\nv_add_u32 v10, s{T1}, v1",
           f"s_mul_i32 s{T1}, s{S_I}, {KV_SLOT}\ns_add_u32 s{S_ST}, s{T1}, s{S_KVG}",
           f"s_add_u32 s{S_KVS}, s{T0}, s{S_ST}"], 14, 58)
    Z = 16
    ops = phi_ops(ACC[0], Z)
    ops += [f"v_permlane32_swap_b32 v{Z}, v{Z+1}", f"v_add_f32 v{Z}, v{Z}, v{Z+1}", f"ds_write_b32 v9, v{Z}"]
    g7 = 16*7 - P.LA
    spread(fill, ops, 66, g7)
    fill[('bar', 7)] = ["@wait_lgkm zw"]
    put(g7, [f"ds_read_b32 v{12+p}, v11 offset:{p*256}" for p in range(4)])
    spread(fill, ["v_add_f32 v12, v12, v13", "v_add_f32 v14, v14, v15", f"v_subrev_u32 v11, {MISC-4096}, v11", "v_add_f32 v22, v12, v14"], g7 + 4, g7 + 8)
    V = ACC[1]; D = ACC[1] + 16; T = 12
    cv = [f"v_cvt_pk_bf16_f32 v{V+e}, v{V+2*e}, v{V+2*e+1}" for e in range(16)]
    def kvm(b): return [f"{MF} {vr(D,16)}, {vr(PK+8*b,4)}, {vr(V+8*b,4)}, 0", f"{MF} {vr(D,16)}, {vr(PK+8*b+4,4)}, {vr(V+8*b+4,4)}, {vr(D,16)}"]
    def sel(b):
        return ([f"v_cndmask_b32 v{T+e}, v{D+8+e}, v{D+e}, {MASK}" for e in range(8)],
                [f"ds_write_b128 v8, {vr(T+4*q,4)} offset:{b*2048+q*512}" for q in range(2)])
    g = 129; g9 = 16*9 - P.LA
    put(g, cv[:8]); put(g+1, cv[8:]); put(g+2, kvm(0))
    o, w = sel(0); put(g+5, o + kvm(1) + w)
    o, w = sel(1); put(min(g+8, g9-1), o + w)
    fill[('bar', 9)] = ["@wait_lgkm kvw"]
    g = g9
    put(g, [f"ds_read_b128 {vr(V+4*p,4)}, v10 offset:{p*4096}" for p in range(4)])
    ops = [f"v_add_f32 v{V+e}, v{V+e}, v{V+4+e}" for e in range(4)]
    ops += [f"v_add_f32 v{V+8+e}, v{V+8+e}, v{V+12+e}" for e in range(4)]
    ops += [f"v_add_f32 v{V+e}, v{V+e}, v{V+8+e}" for e in range(4)]
    ops += [f"buffer_store_dwordx4 {vr(V,4)}, v1, s[{R_WS}:{R_WS+3}], s{S_KVS} offen sc1",
            f"buffer_store_dword v22, v11, s[{R_WS}:{R_WS+3}], s{S_ST} offen sc1"]
    put(g+3, ops)
    put(g+5, [f"s_lshl2_add_u32 s{T0}, s{S_WV}, {AFL}\nv_mov_b32 v18, s{T0}", "v_mov_b32 v23, 0", "ds_write_b32 v18, v23"])
    put(g+6, ["v_and_b32 v19, 3, v0", "v_lshlrev_b32 v19, 2, v19", f"v_add_u32 v19, {AFL}, v19"])
    fill[('bar', 10)] = ["@wait_lgkm fz"]
    assert P.lastA >= 10
    spread(fill, ["v_and_b32 v21, 15, v0", "v_bfe_u32 v8, v0, 4, 1", f"v_mul_u32_u24 v9, {KV_SLOT}, v8",
           "v_lshl_add_u32 v9, v21, 4, v9", "v_lshl_add_u32 v9, v7, 8, v9", f"v_mul_u32_u24 v11, {KV_SLOT}, v21",
           "v_lshl_add_u32 v11, v8, 5, v11", "v_lshl_add_u32 v11, v7, 4, v11", f"v_subrev_u32 v8, {MISC-AFR}, v10", f"v_add_u32 v10, {AFR}, v1",
           "v_mov_b32 v23, 1",
           f"s_lshl2_add_u32 s{T0}, s{S_IDX}, 112\ns_lshl_b32 s{T0}, s{T0}, 10\ns_add_u32 s{S_ST}, s{T0}, s{S_A2B}",
           f"s_lshl_b32 s{T0}, s{S_WV}, 6\ns_add_u32 s{T0}, s{T0}, s{S_KVG}\ns_add_u32 s{S_KVS}, s{T0}, 4096",
           f"s_lshl_b32 s{T0}, s{S_WV}, 10\ns_add_u32 s{S_KVG}, s{T0}, s{S_KVG}"], g + 7, g + 22)
    put(min(g + 4 + P.kv_delay, 191), ["@wait_vm kvs\n" + flag_set(S_KVW, 0)])
    if P.kvpoll[0] < 0: put(191 + P.kvpoll[0], [poll_load(4, 16, S_KVF, 0)])
    g1_main(a, [(False, False, 0), (False, False, 1), (False, True, 0)], fill, P.lastA)
    if P.prio_tail != P.prio_g1: a(f"s_setprio {P.prio_tail}")
    ph = phi_ops(ACC[0], None)
    n1 = len(ph)*max(P.kvpoll[0], 0)//8; n2 = len(ph)*P.kvpoll[1]//8
    for op in ph[:n1]: a(op)
    if P.kvpoll[0] >= 0: a(poll_load(4, 16, S_KVF, 0))
    for op in ph[n1:n2]: a(op)
    stamp(a, 'g1_7')
    a(poll_check(4, 16, S_KVF, 0))
    stamp(a, 'g1_8')
    ZR = X + 64
    a(f"buffer_load_dwordx4 {vr(ZR,4)}, v11, s[{R_WS}:{R_WS+3}], s{S_KVS} offen sc1")
    for m in range(8):
        for q in range(2):
            a(f"buffer_load_dwordx4 {vr(X+8*m+4*q,4)}, v9, s[{R_WS}:{R_WS+3}], s{S_KVG} offen offset:{q*512} sc1")
        if m < 7: a(f"s_add_u32 s{S_KVG}, s{S_KVG}, {2*KV_SLOT}")
    for op in ph[n2:]: a(op)
    for sh in (1, 2, 4, 8):
        for e in range(4): a(f"v_add_f32 v{ZR+e}, v{ZR+e}, v{ZR+e} row_ror:{sh} row_mask:0xf bank_mask:0xf")
    for e in range(4): a(f"v_mov_b32 v{ZR+4+e}, v{ZR+e}")
    for e in range(4): a(f"v_permlane16_swap_b32 v{ZR+e}, v{ZR+4+e}")
    for e in range(4): a(f"v_cvt_pk_bf16_f32 v{ZR+e}, v{ZR+2*e}, v{ZR+2*e+1}")
    for m in range(1, 8):
        for e in range(8): a(f"v_add_f32 v{X+e}, v{X+e}, v{X+8*m+e}")
    for e in range(4): a(f"v_permlane16_swap_b32 v{X+e}, v{X+4+e}")
    for e in range(4): a(f"v_add_f32 v{X+e}, v{X+e}, v{X+4+e}")
    for e in range(2): a(f"v_cvt_pk_bf16_f32 v{X+e}, v{X+2*e}, v{X+2*e+1}")
    for e in range(2): a(f"v_mov_b32 v{X+2+e}, v{X+e}")
    for e in range(2): a(f"v_permlane16_swap_b32 v{X+e}, v{X+2+e}")
    for e in range(4): a(f"v_cndmask_b32 v{ZR+e}, v{ZR+e}, v{X+e}, {MASK}")
    a(f"ds_write_b128 v8, {vr(ZR,4)}")
    a("ds_write_b32 v18, v23")
    stamp(a, 'g1_9')
    a(lds_wait(21, 19, 1))
    for hd in range(4): a(f"ds_read_b128 {vr(WF+4*hd,4)}, v10 offset:{hd*1024}")
    for hd in range(4): a(f"{MF} {vr(64+16*hd,16)}, {vr(WF+4*hd,4)}, {vr(PK+4*hd,4)}, 0")
    for hd in range(4):
        d = 64+16*hd
        a(f"""v_add_f32 v16, {hx(1e-6)}, v{d+8}
        v_rcp_f32 v16, v16""")
        for e in range(8): a(f"v_mul_f32 v{d+e}, -v{d+e}, v16")
        for e in range(4): a(f"v_cvt_pk_bf16_f32 v{d+e}, v{d+2*e}, v{d+2*e+1}")
        a(f"buffer_store_dwordx4 {vr(d,4)}, v1, s[{R_WS}:{R_WS+3}], s{S_ST} offen offset:{hd*1024} sc1")
    stamp(a, 'g1_10')
    a("s_waitcnt vmcnt(0)")
    a(flag_set(S_FLA, 64))
    stamp(a, 'g1_11')
    stamp_out(a, 0)
    a("s_endpgm")

A2R = 8; B2R = 48; AC2 = 192
WV_F = AC2; WV_H = AC2 + 4; DUM = AC2 + 8
S_TH, S_THH, S_TO, S_TB, S_SO = 56, 60, 64, 68, 70
M16 = "v_mfma_f32_16x16x32_bf16"
S_RB = 4; S_CB = 10; S_LW = 14; S_LX = 15; S_FH = 16
S_POLL = R_W

def g2_setup(a):
    a("G2_START:")
    a("@restore top")
    a("s_waitcnt lgkmcnt(0)")
    decode(a)
    a(f"""s_cmp_eq_u32 s{S_TYPE}, 0
    s_movk_i32 s{T0}, 3072
    s_cselect_b32 s{S_STRIDE}, s{T0}, 3584
    v_and_b32 v4, 1, v4
    v_lshlrev_b32 v5, 2, v4
    v_xor_b32 v5, v5, v2
    v_lshlrev_b32 v5, 4, v5
    v_mad_u32_u24 v{WV_F}, v1, s{S_STRIDE}, v5
    s_lshl_b32 s{T0}, s{S_STRIDE}, 3
    s_sub_u32 s{T0}, s{T0}, 1024
    v_add_u32 v{WV_F+1}, s{T0}, v{WV_F}
    v_add_u32 v{WV_F+2}, s{T0}, v{WV_F+1}
    v_add_u32 v{WV_F+3}, s{T0}, v{WV_F+2}
    v_lshrrev_b32 v8, 2, v0
    v_and_b32 v9, 3, v0
    v_lshlrev_b32 v10, 4, v9
    v_mad_u32_u24 v{WV_H}, v8, s{S_STRIDE}, v10
    s_lshl_b32 s{T0}, s{S_STRIDE}, 4
    s_sub_u32 s{T0}, s{T0}, 1024
    v_add_u32 v{WV_H+1}, s{T0}, v{WV_H}
    v_add_u32 v{WV_H+2}, s{T0}, v{WV_H+1}
    v_add_u32 v{WV_H+3}, s{T0}, v{WV_H+2}
    s_mov_b32 s{S_BUD}, {P.spin}""")
    if P.prio_g2: a(f"s_setprio {P.prio_g2}")
    a(f"""s_cmp_eq_u32 s{S_TYPE}, 0
    s_cselect_b64 s[{R_W}:{R_W+1}], s[{S_WQKV}:{S_WQKV+1}], s[{S_W1}:{S_W1+1}]
    s_lshl_b32 s{R_W+2}, s{S_STRIDE}, 9
    s_mov_b32 s{R_W+3}, 0x20000""")
    srd(a, R_X, S_X, 2048*1024)
    srd(a, R_WS, S_WS, WS_USED)
    srd(a, R_W2, S_W2, 1792*1024)
    srd(a, R_WO, S_WO, 512*1024)
    srd(a, R_OUT, S_OUT, 2048*1024)
    a(f"""s_lshr_b32 s{T2}, s{S_WV}, 1
    s_lshl_b32 s{T2}, s{T2}, 2
    s_and_b32 s{T1}, s{S_WV}, 1""")
    for tau in range(4):
        a(chunk(T0, ('s', T2)))
        a(f"""s_lshl1_add_u32 s{T0}, s{T0}, s{T1}
        s_lshl_b32 s{T0}, s{T0}, 5
        s_mul_i32 s{S_RB+tau}, s{T0}, s{S_STRIDE}
        s_add_u32 s{T2}, s{T2}, 8""")
    a(f"s_lshl_b32 s{T2}, s{S_WV}, 2")
    for tau in range(2):
        a(chunk(T0, ('s', T2)))
        a(f"""s_lshl_b32 s{T0}, s{T0}, 6
        s_mul_i32 s{S_RB+4+tau}, s{T0}, s{S_STRIDE}
        s_add_u32 s{T2}, s{T2}, 16""")
    a(f"""s_lshl_b32 s58, s{S_IDX}, 7
    s_mul_i32 s59, s{S_IDX}, 448
    s_and_b32 s60, s{S_IDX}, 1
    s_lshl_b32 s{T0}, s60, 6
    s_add_u32 s61, s{T0}, s59
    s_add_u32 s62, s58, 1024
    s_add_u32 s{T0}, s58, 2048
    s_add_u32 s{T1}, s61, 128
    s_add_u32 s{T2}, s61, 256
    s_cmp_eq_u32 s{S_TYPE}, 0
    s_cselect_b32 s{S_CB}, s62, s61
    s_cselect_b32 s{S_CB+1}, s{T0}, s{T1}
    s_cselect_b32 s{S_CB+2}, s58, s{T2}
    s_cmp_eq_u32 s60, 0
    s_cselect_b32 s{T0}, 384, 0
    s_add_u32 s{S_CB+3}, s59, s{T0}
    s_lshl_b32 s{S_LW}, s{S_WV}, 12
    s_add_u32 s{S_LW}, s{S_LW}, {RING}
    s_lshl_b32 s{S_LX}, s{S_WV}, 14""")
    a(f"""s_lshr_b32 s{T0}, s{S_IDX}, 2
    s_lshl1_add_u32 s{T0}, s{S_I}, s{T0}
    s_lshr_b32 s{T2}, s{S_T}, 2
    s_xor_b32 s{T2}, s{T2}, {P.ntx}
    s_lshl_b32 s{T2}, s{T2}, 7
    v_lshrrev_b32 v4, 4, v0
    v_lshlrev_b32 v5, 1, v4
    v_xor_b32 v5, v5, v2
    v_lshlrev_b32 v5, 4, v5
    v_lshl_add_u32 v1, v1, 10, v5
    v_add_u32 v1, s{T2}, v1
    v_add_u32 v2, 7168, v1
    s_lshl2_add_u32 s{T1}, s{T0}, s{S_WV}
    s_lshl_b32 s{T1}, s{T1}, {P.fh}
    s_add_u32 s{T1}, s{T1}, {FL_H}
    s_add_u32 s{S_FH}, s{S_WS}, s{T1}
    s_addc_u32 s{S_FH+1}, s{S_WS+1}, 0
    s_lshl_b32 s{T1}, s{S_TYPE}, 1
    s_xor_b32 s{T1}, s{T1}, s{S_WV}
    s_lshl2_add_u32 s{T0}, s{T0}, s{T1}
    s_lshl_b32 s{S_STRIDE}, s{T0}, 14
    s_add_u32 s{S_STRIDE}, s{S_STRIDE}, s{T2}
    s_lshr_b32 s{T0}, s{T0}, 1
    s_mul_i32 s{S_TB}, s{T0}, {TBS}
    s_xor_b32 s{T0}, s{T0}, 1
    s_mul_i32 s{S_TB+1}, s{T0}, {TBS}
    s_and_b32 s{T1}, s{T1}, 1
    s_lshl_b32 s{T1}, s{T1}, 8
    v_and_b32 v6, 15, v0
    v_lshlrev_b32 v6, 4, v6
    v_lshl_add_u32 v6, v4, 9, v6
    v_add_u32 v5, s{T1}, v6
    v_xor_b32 v6, 256, v5
    v_and_b32 v8, 3, v8
    v_and_b32 v10, 1, v4
    v_lshl_add_u32 v10, v10, 2, v8
    v_lshrrev_b32 v11, 1, v10
    v_lshlrev_b32 v11, 5, v11
    v_lshl_add_u32 v11, v9, 3, v11
    v_lshl_add_u32 v11, v10, 7, v11
    v_lshrrev_b32 v10, 5, v0
    v_lshl_add_u32 v11, v10, 11, v11
    v_add_u32 v0, s{S_LX}, v11
    v_xor_b32 v3, 32, v0
    v_xor_b32 v4, 64, v0
    v_xor_b32 v7, 0x60, v0""")
    if P.touch:
        a(f"""s_load_dword s{S_DUM}, s[{S_FH}:{S_FH+1}], 0 glc
        s_load_dword s{S_DUM}, s[{S_FH}:{S_FH+1}], 64 glc
        s_lshl2_add_u32 s{T0}, s{S_IDX}, s{S_WV}
        s_lshl_b32 s{T0}, s{T0}, {P.fk}
        s_add_u32 s{T0}, s{T0}, {FL_KV}
        s_load_dword s{S_DUM}, s[{S_WS}:{S_WS+1}], s{T0} glc""")
    g2_tables(a)
    stamp(a, 'g2_setup')

def g2_tables(a):
    a(f"""s_lshr_b32 s{T2}, s{S_T}, 2
    s_mul_i32 s{T2}, s{T2}, {P.brot[0]}
    s_mul_i32 s{T0}, s{S_T}, {P.brot[1]}
    s_add_u32 s{T2}, s{T2}, s{T0}
    s_mul_i32 s{S_I}, s{S_WV}, 28
    s_lshl_b32 s{S_IDX}, s{S_WV}, 3""")
    for j in range(4):
        a(f"""s_add_u32 s{T0}, s{T2}, {j}
        s_and_b32 s{T0}, s{T0}, 3
        s_lshl1_add_u32 s{T1}, s{T0}, s{S_IDX}
        s_lshl_b32 s{S_TO+j}, s{T1}, 10
        s_and_b32 s{T1}, s{T0}, 1
        s_lshl1_add_u32 s{T1}, s{T1}, s{S_I}""")
        if j < 2:
            a(f"""s_add_u32 s{S_THH+j}, s{T1}, 12
            s_lshl_b32 s{S_THH+j}, s{S_THH+j}, 10""")
        a(f"""s_lshr_b32 s{T0}, s{T0}, 1
        s_lshl4_add_u32 s{T1}, s{T0}, s{T1}
        s_lshl_b32 s{S_TH+j}, s{T1}, 10""")

def step_info(d):
    if d < 12: return (S_TH + d % 4, (d//4)*4096, (d//4)*65536, R_W2)
    if d < 14: return (S_THH + d - 12, 0, 0, R_W2)
    return (S_TO + d - 14, 112*1024, 0, R_WO)

def g2_body(a, typ):
    NT = 14 if typ == 'F' else 12
    last = P.lastF if typ == 'F' else P.lastA
    SRES = S_STRIDE
    regsteps = [0, 1] + list(range(6, 13))
    def breg(d): return B2R + 16*regsteps.index(d)
    order = P.border or (regsteps + [2, 3, 4, 5, 17])
    xo = [d for d in order if d < 17]
    assert sorted(xo[:9]) == regsteps and sorted(order) == list(range(13)) + [17]
    slot = {d: k % 4 for k, d in enumerate(xo)}
    for d in range(13, 17): slot[d] = slot[d - 11]
    slot[17] = 4
    TRX = [0, 3, 4, 7]; TRM = [B2R + 32 + k for k in range(4)]
    nbar = [0]; nvm = [0]; defer = []
    lastrd = {}; owner = {}
    def flush(pred):
        idx = [k for k, d in enumerate(defer) if pred(d)]
        if idx:
            for d in defer[:idx[-1]+1]: b2rd(d[1], breg(d[1]))
            del defer[:idx[-1]+1]
    def vm(text, thr=True):
        if thr:
            flush(lambda d: d[0] <= nvm[0])
            a(f"@throttle {P.maxout}")
        a(text); nvm[0] += 1
    def wtile(t):
        half = t >= 12
        un, tau = (3, t - 12) if half else (t//4, t % 4)
        assert t < NRING or nbar[0] > t - 3, (t, nbar)
        stamp(a, f'g2_w{t}')
        a(f"""s_add_u32 m0, s{S_LW}, {(t % NRING)*16384}
        s_add_u32 s{T1}, s{S_CB+un}, s{S_RB+(4 if half else 0)+tau}""")
        for q in range(4):
            vm(f"buffer_load_dwordx4 v{(WV_H if half else WV_F)+q}, s[{R_W}:{R_W+3}], s{T1} offen offset:{q*1024} lds ; @tag w{t}")
    def b2dma(d, hf, thr=True):
        sl = slot[d]
        if hf == 0:
            if sl in owner: flush(lambda x: x[1] == owner[sl])
            if sl in lastrd: a(f"@wait_lgkm {lastrd[sl]}")
            owner[sl] = d
        tb, _, c2, R = step_info(d)
        if sl == 4:
            assert typ == 'F' or nbar[0] > 10
            a(f"s_add_u32 m0, s{S_LW}, {MISC - RING + hf*2048}")
        else: a(f"s_add_u32 m0, s{S_LX}, {sl*4096 + hf*2048}")
        a(f"s_lshl4_add_u32 s{T1}, s{tb}, {c2 + hf*16384}")
        for q in range(2):
            if P.nob2 and thr: continue
            vm(f"buffer_load_dwordx4 v{1+q}, s[{R}:{R+3}], s{T1} offen offset:{q*1024} lds ; @tag b{d}", thr)
        if hf == 1 and d in regsteps: defer.append((nvm[0] + P.maxout, d))
    def b2rd(d, dst, rds=range(8)):
        sl = slot[d]; o = (sl % 4)*4096
        a(f"@wait_vm b{d}")
        for r in rds:
            ad = (TRX if sl < 4 else TRM)[r >> 1]
            a(f"ds_read_b64_tr_b16 {vr(dst+2*r,2)}, v{ad} offset:{o+1024*(r&1)} ; @tag r{d}")
        lastrd[sl] = f"r{d}"
    prog = (P.progF if typ == 'F' else P.progA).replace(' ', '')
    assert prog.count('W') == NT and prog.count('B') == 28 and prog.count('|') == 1 and prog.count('P') == 1 \
        and prog.count('.') == last + 1 and prog.index('P') > prog.rindex('W'), prog
    nw = nb = 0; bar = False
    for c in prog:
        if c == 'W':
            assert bar
            wtile(nw); nw += 1
        elif c == 'B':
            assert bar
            b2dma(order[nb//2], nb & 1); nb += 1
        elif c == '|':
            a("s_barrier"); bar = True
            a(nonce_load())
        elif c == '.':
            k = nbar[0]
            need = k if k < last else NT - 1
            assert nw > need
            a(f"@wait_vm w{need}")
            if k == 0: a(nonce_check())
            stamp(a, f'g2_e{k}')
            a("s_barrier")
            stamp(a, f'g2_t{k}')
            nbar[0] += 1
        elif c == 'P': a(poll_load(S_POLL, 4, S_FH, 0))
        else: raise ValueError(c)
    flush(lambda d: True)
    stamp(a, 'g2_p1end')
    if P.prio_g2b != P.prio_g2: a(f"s_setprio {P.prio_g2b}")
    minis = [(d, g) for d in range(14) for g in range(4)] + [(d, g) for g in (3, 2, 1, 0) for d in range(14, 18)]
    NM = len(minis); NB = 2*P.RD
    bbuf = {d: breg(d) for d in regsteps}
    for d in (2, 3, 4, 5): bbuf[d] = B2R + 16*(d & 1)
    bbuf.update({13: B2R, 14: B2R + 16, 15: breg(8), 16: breg(9), 17: breg(10)})
    stage = {0: 0, 16: 1, 32: 2, 48: 3, 56: 4}
    iss = {}; lo = -1
    for m in range(NM):
        lo = max(lo, P.hold.get(m, -1)); iss[m] = max(m - NB, lo, -1)
    pollat = {}
    for (m, k), prev in zip(list(stage.items())[1:], stage): pollat[max(iss[m] - 2*P.pa, iss[prev])] = k
    cur = {}
    def a2pre(m):
        d, g = minis[m]
        if m in stage:
            stamp(a, f'g2_pre{m//2}')
            a(poll_check(S_POLL, 4, S_FH, 16*stage[m]))
            stamp(a, f'g2_c{m//2}')
            adj = {0: 0, 16: 4096, 32: 4096, 48: -8192, 56: 112*1024}[m]
            for k in range(2):
                if adj: a(f"s_add_i32 s{S_TB+k}, s{S_TB+k}, {adj}")
        if cur.get('k') != (d, g >> 1):
            a(f"s_add_u32 s{S_SO}, s{step_info(d)[0]}, s{S_TB+(g>>1)}"); cur['k'] = (d, g >> 1)
    def a2ld(m):
        a(f"buffer_load_dwordx4 {vr(A2R+4*(m%NB),4)}, v{5+(minis[m][1]&1)}, s[{R_WS}:{R_WS+3}], s{S_SO} offen sc1")
    def after(t, part):
        ms = [m for m in range(NM) if iss[m] == t]
        if part == 0:
            if ms: a2pre(ms[0])
        else:
            for n, m in enumerate(ms):
                if n: a2pre(m)
                a2ld(m)
            if t in pollat: a(poll_load(S_POLL, 4, S_FH, 16*pollat[t]))
    after(-1, 0); after(-1, 1)
    XA = B2R + 36; XR = B2R + 40; UU = B2R + 48; RA = breg(11)
    extra = {}
    def put(m, k, txt): extra.setdefault((m, k), []).append(txt)
    gaps = [(m, k) for m in range(NM) for k in (1, 2, 3)]
    for d in (2, 3, 4, 5):
        for r in range(8): put(*gaps[12*(d-1) + r], ('rd', d, (r,)))
    for n, d in enumerate((13, 14, 15, 16, 17)):
        for r in range(8): put(24 + 6*n + (0, 0, 1, 2, 3, 3, 4, 5)[r], (1, 2, 1, 1, 1, 2, 1, 1)[r], ('rd', d, (r,)))
    for d in range(2, 6):
        for h in range(2): put(4*d + 2 + h, 3, ('dma', d + 11, h))
    put(28, 2, f"""v_mbcnt_lo_u32_b32 v{XA+1}, -1, 0
        v_mbcnt_hi_u32_b32 v{XA+1}, -1, v{XA+1}""")
    put(29, 2, f"""v_and_b32 v{XA}, 15, v{XA+1}
        v_lshlrev_b32 v{XA}, 10, v{XA}""")
    put(31, 2, f"""v_bfe_u32 v{XA+2}, v{XA+1}, 4, 1
        v_lshl_add_u32 v{XA}, v{XA+2}, 5, v{XA}""")
    put(32, 2, f"""v_lshrrev_b32 v{XA+2}, 5, v{XA+1}
        v_lshl_add_u32 v{XA}, v{XA+2}, 4, v{XA}""")
    put(34, 2, f"""v_lshlrev_b32 v{XA+1}, 4, v{XA+1}
        v_add_u32 v{XA+2}, s{S_LX}, v{XA+1}""")
    put(35, 2, f"""s_sub_u32 s{T0}, s{S_LW}, s{S_LX}
        s_add_u32 s{T0}, s{T0}, {MISC-RING}""")
    for k in range(4): put(37 + k//2, 2, f"v_add_u32 v{TRM[k]}, s{T0}, v{TRX[k]}")
    put(P.resat, 3, f"""buffer_load_dwordx4 {vr(XR,4)}, v{XA}, s[{R_X}:{R_X+3}], s{SRES} offen
        buffer_load_dwordx4 {vr(XR+4,4)}, v{XA}, s[{R_X}:{R_X+3}], s{SRES} offen offset:64""")
    put(56, 2, f"""s_mov_b32 s{T0}, {hx(-LN2)}
        s_mov_b32 s{T1}, 0xffff0000""")
    for g in range(1, 4):
        put(56 + g, 2, f"""s_xor_b32 s{T2}, s{S_WV}, {g}
        s_lshl_b32 s{T2}, s{T2}, 14
        v_add_u32 v{RA+g}, s{T2}, v{XA+1}""")
    for g in (3, 2, 1):
        m0 = 56 + 4*(4 - g)
        for cb in range(4):
            put(m0 + (cb >> 1), 2 + (cb & 1), f"ds_write_b128 v{XA+2}, {vr(AC2+16*g+4*(3-cb),4)} offset:{(g-1)*4096+(3-cb)*1024}")
    sw = [f"v_permlane16_swap_b32 v{XR+4*p+k}, v{XR+4*p+2+k}" for p in range(2) for k in range(2)]
    un = [f"v_lshlrev_b32 v{UU+2*k}, 16, v{XR+k}\nv_and_b32 v{UU+2*k+1}, s{T1}, v{XR+k}" for k in range(8)]
    put(62, 1, "\n".join(sw[:2])); put(62, 3, "\n".join(sw[2:]))
    for k in range(8): put((63, 66, 67)[k//3], 1 + k % 3, un[k])
    PR = [None, A2R, A2R + 16, B2R + 16]
    bar_at = P.barat
    for m, (d, g) in enumerate(minis):
        if m % 2 == 0: stamp(a, f'g2_s{m//2}')
        if m == bar_at:
            stamp(a, 'g2_tb')
            a("s_waitcnt lgkmcnt(0)\ns_barrier")
            stamp(a, 'g2_ta')
            for cb in range(4):
                for gg in (1, 2, 3): a(f"ds_read_b128 {vr(AC2+16*gg+4*cb,4)}, v{RA+gg} offset:{(gg-1)*4096+cb*1024}")
        for k in range(4):
            cb = k if m % 2 == 0 else 3 - k
            acc = AC2 + 16*g + 4*cb
            a(f"{M16} {vr(acc,4)}, {vr(bbuf[d]+4*cb,4)}, {vr(A2R+4*(m%NB),4)}, {'0' if d == 0 else vr(acc,4)}")
            for it in extra.get((m, k), []):
                if isinstance(it, str): a(it)
                elif it[0] == 'rd': b2rd(it[1], bbuf[it[1]], it[2])
                else: b2dma(it[1], it[2], thr=False)
            if P.split:
                if k == 3: after(m, 0)
                if k == P.split - 1 and m: after(m - 1, 1)
        if not P.split: after(m, 0); after(m, 1)
    stamp(a, 'g2_mend')
    if bar_at >= NM:
        a("s_waitcnt lgkmcnt(0)\ns_barrier")
        for cb in range(4):
            for gg in (1, 2, 3): a(f"ds_read_b128 {vr(AC2+16*gg+4*cb,4)}, v{RA+gg} offset:{(gg-1)*4096+cb*1024}")
    for p in range(2):
        for cb in (2*p, 2*p+1):
            for gg in (1, 2, 3, 0):
                for e in range(4): a(f"v_fmac_f32 v{UU+4*cb+e}, s{T0}, v{AC2+16*gg+4*cb+e}")
        for k in range(4): a(f"v_cvt_pk_bf16_f32 v{XR+4*p+k}, v{UU+8*p+2*k}, v{UU+8*p+2*k+1}")
        a(sw[2*p]); a(sw[2*p+1])
        a(f"buffer_store_dwordx4 {vr(XR+4*p,4)}, v{XA}, s[{R_OUT}:{R_OUT+3}], s{SRES} offen offset:{64*p} {P.oflag}")
    stamp(a, 'g2_end')
    stamp_out(a, 1)
    a("s_endpgm")

def kernel():
    U.n = 0
    a = Asm()
    prologue(a)
    g1_start(a)
    g1_f(a)
    g1_a(a)
    g2_setup(a)
    a(f"""s_cmp_eq_u32 s{S_TYPE}, 0
    s_cbranch_scc1 G2_A
    @save g2""")
    g2_body(a, 'F')
    a("G2_A:")
    a("@restore g2")
    g2_body(a, 'A')
    a("K_END:")
    a("s_endpgm")
    return a.finish()

def build():
    kn = NAME + "_kernel"
    s = HEADER
    s += "; @launch grid=(256,1,1) block=(512,1,1) lds=163840\n"
    s += '.amdgcn_target "amdgcn-amd-amdhsa--gfx950"\n.text\n'
    if P.pad is not None: s += f".p2align 10\n.fill {P.pad//4}, 4, 0xbf800000\n"
    s += entry(kn) + kernel()
    s += f"K_LAST:\n.set CODE_BYTES, K_LAST-{kn}\n"
    s += '.section .rodata,"a"\n.p2align 6\n' + kd(kn)
    return s
if __name__ == "__main__":
    for kv in sys.argv[2:]:
        k, v = kv.split("=", 1)
        assert hasattr(P, k), k
        setattr(P, k, eval(v))
    txt = build()
    open(sys.argv[1], "w").write(txt)
```

```python
import re

REG_RE = re.compile(r'^-?\|?(?:abs\()?([vas])(?:(\d+)|\[(\d+):(\d+)\])\)?\|?$')

def regs_of(tok):
    tok = tok.strip()
    if tok in ('vcc',): return {('s', 'vcc_lo'), ('s', 'vcc_hi')}
    if tok in ('vcc_lo', 'vcc_hi'): return {('s', tok)}
    if tok == 'exec': return {('s', 'exec_lo'), ('s', 'exec_hi')}
    if tok in ('exec_lo', 'exec_hi'): return {('s', tok)}
    if tok == 'm0': return {('s', 'm0')}
    m = REG_RE.match(tok)
    if not m: return set()
    f = m.group(1)
    if m.group(2) is not None: return {(f, int(m.group(2)))}
    return {(f, i) for i in range(int(m.group(3)), int(m.group(4)) + 1)}

TRANS = ('v_exp_', 'v_log_', 'v_rcp_', 'v_rsq_', 'v_sqrt_', 'v_sin_', 'v_cos_')

class Ins:
    __slots__ = ('text', 'op', 'ops', 'mods', 'cls', 'defs', 'uses', 'srcA', 'srcB', 'srcC', 'passes',
                 'trans', 'dpp', 'tag', 'store_data', 'wide', 'lds_dma', 'label', 'target', 'dot', 'pseudo')
    def __init__(self, text):
        self.text = text
        self.tag = None; self.pseudo = None; self.label = None; self.target = None
        self.defs = set(); self.uses = set(); self.srcA = set(); self.srcB = set(); self.srcC = set()
        self.passes = 0; self.trans = False; self.dpp = False; self.store_data = set(); self.wide = False
        self.lds_dma = False; self.dot = False; self.op = ''; self.ops = []; self.mods = []
        t = text.split(';')[0].strip()
        m = re.search(r';\s*@tag\s+(\S+)', text)
        if m: self.tag = m.group(1)
        if text.strip().startswith('@'):
            self.cls = 'pseudo'; self.pseudo = text.strip()[1:].split(); return
        if not t: self.cls = 'none'; return
        if t.endswith(':'): self.cls = 'label'; self.label = t[:-1]; return
        if t.startswith('.'): self.cls = 'dir'; return
        parts = t.split(None, 1)
        self.op = op = parts[0]
        rest = parts[1] if len(parts) > 1 else ''
        ops = [o.strip() for o in rest.split(',')] if rest else []
        joined = []
        depth = 0
        for o in ops:
            if depth > 0: joined[-1] += ',' + o
            else: joined.append(o)
            depth += o.count('[') - o.count(']')
        ops = joined
        if ops:
            last = ops[-1].split()
            ops[-1] = last[0] if last else ''
            self.mods = last[1:]
        self.ops = ops
        R = regs_of
        if op.startswith('v_mfma'):
            self.cls = 'mfma'
            self.defs = R(ops[0]); self.srcA = R(ops[1]); self.srcB = R(ops[2]); self.srcC = R(ops[3])
            self.uses = self.srcA | self.srcB | self.srcC
            self.passes = 8 if '32x32x16' in op else 4 if ('16x16x32' in op or '16x16x16' in op) else None
            assert self.passes, op
        elif op.startswith('v_'):
            self.cls = 'valu'
            self.trans = op.startswith(TRANS)
            self.dot = op.startswith('v_dot')
            self.dpp = any(x.startswith(('row_', 'quad_perm', 'wave_')) for x in self.mods) or op.endswith('_dpp')
            if op == 'v_nop': return
            if op.startswith('v_permlane') and 'swap' in op:
                self.defs = R(ops[0]) | R(ops[1]); self.uses = set(self.defs)
            elif op.startswith(('v_add_co', 'v_sub_co', 'v_addc_co', 'v_subb_co')):
                self.defs = R(ops[0]) | R(ops[1])
                for o in ops[2:]: self.uses |= R(o)
            else:
                self.defs = R(ops[0])
                for o in ops[1:]: self.uses |= R(o)
                if op.startswith(('v_fmac', 'v_dot2c', 'v_mac', 'v_writelane')) or self.dpp:
                    self.uses |= self.defs
        elif op.startswith('ds_'):
            self.cls = 'ds'
            if op.startswith(('ds_read', 'ds_bpermute', 'ds_permute', 'ds_swizzle')) or '_rtn' in op:
                self.defs = R(ops[0])
                for o in ops[1:]: self.uses |= R(o)
            else:
                for o in ops: self.uses |= R(o)
        elif op.startswith(('buffer_', 'global_')):
            self.cls = 'vmem'
            if op in ('buffer_wbl2', 'buffer_inv'): return
            if op.startswith('buffer_load'):
                if 'lds' in self.mods:
                    self.lds_dma = True
                    for o in ops: self.uses |= R(o)
                    self.uses |= R('m0')
                else:
                    self.defs = R(ops[0])
                    for o in ops[1:]: self.uses |= R(o)
            elif op.startswith('buffer_store'):
                for o in ops: self.uses |= R(o)
                self.store_data = R(ops[0]); self.wide = op.endswith(('x3', 'x4'))
            elif op.startswith('buffer_atomic'):
                for o in ops: self.uses |= R(o)
                if 'sc0' in self.mods: self.defs = R(ops[0])
            elif op.startswith('global_load'):
                self.defs = R(ops[0])
                for o in ops[1:]: self.uses |= R(o)
            elif op.startswith('global_store'):
                for o in ops: self.uses |= R(o)
                self.store_data = R(ops[1]); self.wide = op.endswith(('x3', 'x4'))
            elif op.startswith('global_atomic'):
                if 'sc0' in self.mods:
                    self.defs = R(ops[0])
                    for o in ops[1:]: self.uses |= R(o)
                else:
                    for o in ops: self.uses |= R(o)
            else: raise ValueError(op)
        elif op.startswith('s_'):
            self.cls = 'salu'
            if op.startswith('s_atomic'):
                self.cls = 'smem'
                for o in ops: self.uses |= R(o)
            elif op.startswith(('s_load', 's_memtime', 's_memrealtime', 's_buffer_load')):
                self.cls = 'smem'
                self.defs = R(ops[0])
                for o in ops[1:]: self.uses |= R(o)
            elif op.startswith(('s_branch', 's_cbranch')):
                self.cls = 'branch'; self.target = ops[0]
                if 'vcc' in op: self.uses = R('vcc')
                if 'exec' in op: self.uses = R('exec')
            elif op.startswith(('s_waitcnt', 's_nop', 's_barrier', 's_endpgm', 's_setprio', 's_sleep')):
                pass
            elif op.startswith(('s_cmp', 's_bitcmp')):
                for o in ops: self.uses |= R(o)
            else:
                self.defs = R(ops[0])
                for o in ops[1:]: self.uses |= R(o)
                if 'saveexec' in op: self.defs |= R('exec'); self.uses |= R('exec')
                if op.startswith(('s_addk', 's_mulk')): self.uses |= self.defs
        else:
            raise ValueError('cannot parse: ' + text)

    def states(self):
        if self.cls in ('none', 'label', 'dir', 'pseudo'): return 0
        if self.op == 's_nop': return int(self.ops[0], 0) + 1
        return 1

def vec(s): return {r for r in s if r[0] in 'va'}
def sca(s): return {r for r in s if r[0] == 's'}

def need(p, c):
    n = 0
    if p.cls == 'valu':
        vd = vec(p.defs); sd = sca(p.defs)
        if c.cls == 'mfma' and vd & c.uses: n = max(n, 2)
        if c.cls == 'valu':
            if p.trans and vd & c.uses: n = max(n, 1)
            if c.op.startswith(('v_readfirstlane', 'v_readlane')) and vd & c.uses: n = max(n, 1)
            if c.op.startswith('v_permlane') and vd & c.uses: n = max(n, 2)
            if c.dpp and vd & c.uses: n = max(n, 2)
            if sd & c.uses:
                n = max(n, 4 if c.op.startswith(('v_readlane', 'v_writelane', 'v_div_fmas')) else 2)
            if c.op.startswith('v_cndmask') and len(c.ops) == 3 and sd & regs_of('vcc'): n = max(n, 2)
        if c.cls == 'vmem' and sd & c.uses: n = max(n, 5)
        if p.dot:
            if c.cls in ('valu', 'mfma', 'vmem', 'ds'):
                if c.op == p.op:
                    ab = set()
                    for o in c.ops[1:3]: ab |= regs_of(o)
                    if vd & ab: n = max(n, 3)
                elif vd & (c.uses | c.defs): n = max(n, 3)
        if p.trans and c.cls in ('vmem', 'ds') and vd & c.uses: n = max(n, 1)
    if p.cls == 'mfma':
        P = p.passes
        if c.cls == 'mfma':
            if p.defs & (c.srcA | c.srcB): n = max(n, P + 4)
            if p.defs & c.srcC and not (p.defs == c.srcC and c.passes == P): n = max(n, P + 2)
            if p.defs & c.defs and not (p.defs == c.defs and c.passes == P): n = max(n, P + 2)
        elif c.cls in ('valu', 'vmem', 'ds'):
            if p.defs & (c.uses | c.defs): n = max(n, P + 4)
            if p.srcC & c.defs: n = max(n, P - 1)
    if p.cls == 'vmem' and p.wide and p.store_data & c.defs:
        n = max(n, 2)
    if p.cls == 'salu' and ('s', 'm0') in p.defs and c.lds_dma: n = max(n, 1)
    return n

LOOK = 20

def fix_hazards_fast(ins):
    for _ in range(50):
        labels = {x.label: i for i, x in enumerate(ins) if x.cls == 'label'}
        srcs = {}
        for i, x in enumerate(ins):
            if x.cls == 'branch': srcs.setdefault(labels[x.target], []).append(i)
        extra = {}
        for i, c in enumerate(ins):
            if c.cls not in ('valu', 'mfma', 'vmem', 'ds'): continue
            worst = 0
            stack = [(i - 1, 0)]
            seen = set()
            while stack:
                j, d = stack.pop()
                while j >= 0 and d < LOOK:
                    if (j, d) in seen: break
                    seen.add((j, d))
                    p = ins[j]
                    if p.cls == 'label':
                        for s in srcs.get(j, []): stack.append((s, d))
                    else:
                        n = need(p, c)
                        if n - d > worst: worst = n - d
                        d += p.states()
                    d += extra.get(j, 0)
                    j -= 1
            if worst > 0: extra[i] = worst
        if not extra: return ins
        out = []
        for i, c in enumerate(ins):
            if i in extra: out.append(Ins(f's_nop {extra[i] - 1}'))
            out.append(c)
        ins = out
    raise RuntimeError('hazard fixing did not converge')

WAIT_RE = re.compile(r'(vmcnt|lgkmcnt)\((\d+)\)')

def auto_waits(ins):
    out = []
    vm = []
    lg = []
    on = True
    saved = {}
    def emit(nv, nl):
        nonlocal vm, lg
        parts = []
        if nv is not None:
            nv = min(nv, 62); parts.append(f'vmcnt({nv})'); vm = vm[len(vm) - nv:] if nv else []
        if nl is not None:
            nl = min(nl, 14); parts.append(f'lgkmcnt({nl})'); lg = lg[len(lg) - nl:] if nl else []
        if parts: out.append(Ins('s_waitcnt ' + ' '.join(parts)))
    for x in ins:
        if x.cls == 'pseudo':
            p = x.pseudo
            if p[0] == 'reset': vm = []; lg = []
            elif p[0] == 'off': on = False
            elif p[0] == 'on': on = True
            elif p[0] == 'throttle':
                n = int(p[1])
                if len(vm) > n: emit(n, None)
            elif p[0] == 'need':
                t = regs_of(p[1]); nv = nl = None
                idx = [i for i, (d, _) in enumerate(vm) if d & t]
                if idx: nv = len(vm) - 1 - idx[-1]
                idx = [i for i, (d, _) in enumerate(lg) if d & t]
                if idx: nl = len(lg) - 1 - idx[-1]
                emit(nv, nl)
            elif p[0] == 'save': saved[p[1]] = (list(vm), list(lg))
            elif p[0] == 'restore': vm, lg = list(saved[p[1]][0]), list(saved[p[1]][1])
            elif p[0] in ('wait_vm', 'wait_lgkm'):
                q = vm if p[0] == 'wait_vm' else lg
                idx = [i for i, (d, t) in enumerate(q) if t in p[1:]]
                if idx:
                    n = len(q) - 1 - idx[-1]
                    emit(n, None) if p[0] == 'wait_vm' else emit(None, n)
            else: raise ValueError(x.text)
            continue
        if not on:
            out.append(x); continue
        if x.op == 's_waitcnt':
            for c, n in WAIT_RE.findall(x.text.split(';')[0]):
                n = int(n)
                if c == 'vmcnt': vm = vm[max(0, len(vm) - n):] if n else []
                else: lg = lg[max(0, len(lg) - n):] if n else []
            out.append(x); continue
        touched = vec(x.uses | x.defs)
        nv = nl = None
        if touched:
            idx = [i for i, (d, t) in enumerate(vm) if d & touched]
            if idx: nv = len(vm) - 1 - idx[-1]
            idx = [i for i, (d, t) in enumerate(lg) if d & touched]
            if idx: nl = len(lg) - 1 - idx[-1]
        if x.cls == 'vmem' and nv is not None and not any(d & vec(x.uses) for d, t in vm): nv = None
        if x.cls == 'ds' and nl is not None and not any(d & vec(x.uses) for d, t in lg): nl = None
        emit(nv, nl)
        out.append(x)
        if x.cls == 'vmem':
            vm.append((vec(x.defs), x.tag))
            if len(vm) > 63:
                pass
        elif x.cls == 'ds': lg.append((vec(x.defs), x.tag))
    return out

import subprocess, tempfile, os
def sizes_of(ins):
    txt = '.amdgcn_target "amdgcn-amd-amdhsa--gfx950"\n.text\n.set CODE_BYTES, 0x10000\n'
    real = [x for x in ins if x.cls not in ('none', 'dir', 'pseudo')]
    txt += '\n'.join(x.text.split(';')[0] for x in real) + '\n'
    d = tempfile.mkdtemp()
    open(d + '/a.s', 'w').write(txt)
    subprocess.run(['clang', '-x', 'assembler', '-target', 'amdgcn-amd-amdhsa', '-mcpu=gfx950', '-c', d + '/a.s', '-o', d + '/a.o'], check=True)
    out = subprocess.run(['llvm-objdump', '-d', '--mcpu=gfx950', d + '/a.o'], capture_output=True, text=True).stdout
    sz = [4*len(l.split('//')[1].split(':')[1].split()) for l in out.split('\n') if '//' in l]
    it = iter(sz)
    return [next(it) if x.cls not in ('none', 'dir', 'pseudo', 'label') else 0 for x in ins]

def align8(ins, pad):
    sz = sizes_of(ins)
    out = []; pos = 0; cand = None; fixed = left = 0
    for x, n in zip(ins, sz):
        if n == 8 and pos % 8:
            if cand is not None:
                c = out[cand]
                out[cand] = Ins(c.text.replace(c.op, c.op + '_e64', 1)); pos += 4; fixed += 1
            elif pad and x.cls in ('mfma',):
                out.append(Ins('s_nop 0')); pos += 4; fixed += 1
            else: left += 1
        if n == 8: cand = None
        out.append(x); pos += n
        if n == 4 and x.cls == 'valu' and not x.op.startswith(('v_readfirstlane', 'v_nop', 'v_permlane', 'v_add_co', 'v_addc_co', 'v_cndmask', 'v_cmp')) and not x.op.endswith(('_e32', '_e64')):
            if cand is None or (pos - 4) % 8 == 0: cand = len(out) - 1
    return out

class Asm:
    def __init__(self): self.lines = []
    def __call__(self, s):
        for l in s.split('\n'):
            l = l.strip()
            if l: self.lines.append(l)
    def finish(self, align=0):
        ins = [Ins(l) for l in self.lines]
        ins = auto_waits(ins)
        ins = fix_hazards_fast(ins)
        if align: ins = align8(ins, align > 1)
        txt = []
        for x in ins:
            t = re.sub(r'\s*;\s*@tag\s+\S+', '', x.text)
            txt.append(t if x.cls in ('label', 'dir') else '    ' + t)
        return '\n'.join(txt) + '\n'
```

```python
import sys
from asmlib import Asm
from common import *

class P:
    stamp = False
    clk = 's_memrealtime'
    LA = 5; NWF = 6
    maxout = 8
    RD = 5
    pa = 4
    prio_g1 = 1; prio_tail = 3; prio_g2 = 0; prio_g2b = 0
    spin = 1 << 22
    pub_delay = 24; kv_delay = 20
    kvpoll = (-8, 3)
    e2frac = 5
    xla = 3
    cluster = True
    lastF = 12; lastA = 10
    mapn = 0
    ntx = 6
    sm_g2 = [[], [], [], []]
    sm_g1 = {}
    hi0 = 128; hi1 = 192
    hold = {}
    dlines = (48, 56, 56, 16)
    dskip = (0, 0)
    xprog = 'r0 x s0 r1 x E s1 r2 x s2 r3 x s3 f x r4 n0 r5 D n1 r6 n2 r7 B n3 s4 s5 N s6 s7 f n4 n5 n6 n7'
    fh = 7; fk = 7; touch = False
    perm = (0x3201, 0x3120, 0x2310, 0x3210)
    wait2 = 0; align = 1
    wrot = 's_lshl2_add_u32 s{R}, s{r}, s{s}'
    brot = (1, 2)
    split = 1; barat = 71; resat = 44
    pad = 256
    oflag = ''
    border = None
    progF = '|WWWWW . BBB . BBB . WB . WB . WBB . WBB . WBB . WBB . WBB . WBB . WBB . BBBP . BBB'
    progA = '|WWWWW . BBB . BBB . WB . WB . WBB . WBB . WBB . WBB . WBBB . BBBB . BPBBBB'
    thr2 = 9; thr2_until = 0
    sleep = 1
    nopoll = False; nob2 = False; hstore = 'sc1'
    st1 = ['g1_x0', 'g1_xdone', 'g1_ln', 'g1_u0', 'g1_u1', 'g1_u2', 'g1_7', 'g1_9', 'g1_11']
    st2 = ['g2_setup', 'g2_e0', 'g2_p1end', 'g2_s1', 'g2_c8', 'g2_c16', 'g2_c28', 'g2_mend', 'g2_end']

TBS = 144*1024
KV_OFF = 64*TBS; KV_SLOT = 4352
FL_H = KV_OFF + 128*KV_SLOT
FL_KV = FL_H + 65536 + 128
EPOCH = FL_KV + 65536
WS_USED = EPOCH + 128
TS_OFF = 128 << 20
RING = 0x10000; NRING = 5; MISC = 0x24000
AFR = RING + 2*16384; AFL = AFR + 4096
M16 = "v_mfma_f32_16x16x32_bf16"
M16K = "v_mfma_f32_16x16x16_bf16"
S_X, S_WQKV, S_WO, S_W1, S_W2, S_OUT, S_DBG, S_WS = 4, 6, 8, 12, 14, 16, 18, 20
R_X, R_W, R_WS, R_W2, R_WO, R_OUT = 24, 28, 32, 36, 40, 44
S_BUD, S_WV, S_I, S_IDX, S_TYPE, S_ROT, S_STRIDE, S_T, S_NONCE = 0, 3, 22, 23, 48, 49, 50, 51, 52
T0, T1, T2 = 54, 55, 1
S_PERM = 75

def srd(a, d, base, size):
    a(f"""s_mov_b64 s[{d}:{d+1}], s[{base}:{base+1}]
    s_mov_b32 s{d+2}, {size}
    s_mov_b32 s{d+3}, 0x20000""")

NST = 10
S_DUM = 100
def stamp(a, name):
    if not P.stamp or P.stamp == 'lite': return
    for lst in (P.st1, P.st2):
        if name in lst:
            n = lst.index(name) + 1
            a(f"{P.clk} s[{78+2*n}:{79+2*n}]")
def stamp_init(a):
    if not P.stamp: return
    a("s_memrealtime s[76:77]")
    if P.stamp == 'lite': return
    a(f"{P.clk} s[78:79]")
    for n in range(1, NST): a(f"s_mov_b32 s{78+2*n}, 0")
def stamp_out(a, role):
    if not P.stamp or (P.stamp == 'lite' and role == 0): return
    a(f"""s_waitcnt vmcnt(0) lgkmcnt(0)
    {P.clk} s[56:57]
    s_memrealtime s[58:59]
    s_lshl_b32 s{T0}, s2, 3
    s_add_u32 s{T0}, s{T0}, s{S_WV}
    s_add_u32 s{T0}, s{T0}, {4*role}
    s_lshl_b32 s{T0}, s{T0}, 6
    s_add_u32 s{T0}, s{T0}, {TS_OFF}
    v_mov_b32 v1, s{T0}
    s_waitcnt lgkmcnt(0)""")
    srcs = [f"s{78+2*n}" for n in range(NST)] + ["0", "0", "0", "s56", "s58", "s76"]
    for n, s in enumerate(srcs):
        if P.stamp == 'lite' and n < 14: continue
        a(f"v_mov_b32 v2, {s}")
        a(f"global_store_dword v1, v2, s[{S_WS}:{S_WS+1}] offset:{4*n}")

class U: n = 0
def uid():
    U.n += 1; return U.n

def budget(n):
    return f"""s_sub_u32 s{S_BUD}, s{S_BUD}, {n}
    s_cmp_lt_i32 s{S_BUD}, 0"""

def nonce_load():
    return f"s_load_dwordx2 s[{S_NONCE}:{S_NONCE+1}], s[{S_DBG}:{S_DBG+1}], 0"
def nonce_check():
    n = uid()
    return f"""RE{n}:
    s_waitcnt lgkmcnt(0)
    s_cmp_lg_u32 s{S_NONCE+1}, 0
    s_cbranch_scc1 OK{n}
    s_sleep 4
    s_load_dwordx2 s[{S_NONCE}:{S_NONCE+1}], s[{S_DBG}:{S_DBG+1}], 0 glc
    {budget(16)}
    s_cbranch_scc0 RE{n}
    s_waitcnt lgkmcnt(0)
    OK{n}:
    s_mov_b32 s{S_NONCE+1}, s{S_NONCE}"""
def flag_set(base, off):
    return f"s_atomic_swap s{S_NONCE}, s[{base}:{base+1}], {off}"
def poll_load(dst, nw, base, off):
    if P.nopoll: return ""
    return f"s_load_dwordx{nw} s[{dst}:{dst+nw-1}], s[{base}:{base+1}], {off} glc"
def poll_check(dst, nw, base, off):
    if P.nopoll: return ""
    n = uid()
    NP = f"s[{S_NONCE}:{S_NONCE+1}]"
    t = [f"s_xor_b64 s[{dst+2*k}:{dst+2*k+1}], s[{dst+2*k}:{dst+2*k+1}], {NP}" for k in range(nw//2)]
    t += [f"s_or_b64 s[{dst}:{dst+1}], s[{dst}:{dst+1}], s[{dst+2*k}:{dst+2*k+1}]" for k in range(1, nw//2)]
    t = "\n".join(t)
    return f"""RE{n}:
    s_waitcnt lgkmcnt(0)
    {t}
    s_cbranch_scc0 OK{n}
    {f's_sleep {P.sleep}' if P.sleep else ''}
    {poll_load(dst, nw, base, off)}
    {budget(16)}
    s_cbranch_scc0 RE{n}
    s_waitcnt lgkmcnt(0)
    OK{n}:"""
def lds_wait(vd, vaddr, val):
    n = uid()
    return f"""RE{n}:
    ds_read_b32 v{vd}, v{vaddr}
    {budget(1)}
    s_cbranch_scc1 OK{n}
    s_waitcnt lgkmcnt(0)
    v_cmp_gt_u32 vcc, {val}, v{vd}
    s_cbranch_vccnz RE{n}
    OK{n}:"""

def cost(t):
    op = t.split()[0]
    if op.startswith('@') or op.endswith(':'): return 0
    if op.startswith(('v_exp', 'v_rcp', 'v_rsq')): return 8
    if op.startswith('v_mfma'): return 32
    if op.startswith(('buffer_', 'global_')): return 12
    if op.startswith('ds_'): return 8
    return 4
def gcost(it): return sum(cost(l.strip()) for l in it.split('\n') if l.strip())
def spread(fill, items, lo, hi):
    tot = sum(gcost(it) for it in items); acc = 0; n = hi - lo
    for it in items:
        c = gcost(it)
        fill.setdefault(lo + min(n - 1, int((acc + c/2) * n / max(tot, 1))), []).append(it)
        acc += c

def decode(a):
    a(f"""s_lshr_b32 s{S_IDX}, s{S_T}, 2
    s_lshr_b32 s{S_TYPE}, s{S_IDX}, 2
    s_and_b32 s{S_IDX}, s{S_IDX}, 3
    s_bfe_u32 s{T1}, s2, {0x10000 if P.mapn else 0x10002}
    s_lshl2_add_u32 s{S_IDX}, s{T1}, s{S_IDX}
    s_and_b32 s{T1}, s{S_T}, 3
    s_mov_b32 s{S_PERM}, {P.perm[0]}""")
    for r in range(1, 4):
        a(f"""s_cmp_eq_u32 s{T1}, {r}
        s_cselect_b32 s{S_PERM}, {P.perm[r]}, s{S_PERM}""")
def chunk(dst, c):
    if isinstance(c, int): t = f"s_lshr_b32 s{dst}, s{S_PERM}, {4*c}"
    else: t = f"s_lshr_b32 s{dst}, s{S_PERM}, s{c[1]}"
    return t + f"\ns_add_u32 s{dst}, s{dst}, s{S_ROT}\ns_and_b32 s{dst}, s{dst}, 3"

def prologue(a):
    a(f"""s_load_dwordx16 s[4:19], s[0:1], 0
    s_load_dwordx2 s[20:21], s[0:1], 64
    s_cmp_ge_u32 s2, 256
    s_cbranch_scc1 K_END""")
    stamp_init(a)
    a(f"""s_getpc_b64 s[24:25]
    v_lshrrev_b32 v3, 5, v0
    s_lshr_b32 s{S_T}, s2, 3
    v_lshlrev_b32 v2, 7, v3
    v_lshl_add_u32 v2, s{S_T}, 11, v2
    v_min_u32 v2, CODE_BYTES-256, v2
    global_load_dword v47, v2, s[24:25]
    v_lshrrev_b32 v3, 6, v0
    v_and_b32 v0, 63, v0
    v_readfirstlane_b32 s{S_TYPE}, v3
    s_bfe_u32 s{S_ROT}, s2, {0x20001 if P.mapn else 0x20000}
    s_and_b32 s{T1}, s{S_T}, 3
    s_lshl2_add_u32 s{S_I}, s{S_ROT}, s{T1}
    s_lshr_b32 s{T0}, s{S_T}, 3
    s_add_u32 s{S_ROT}, s{S_ROT}, s{T0}
    s_cmp_eq_u32 s{T1}, 0
    s_cselect_b32 s{S_PERM}, {P.perm[0] & 15}, {P.perm[1] & 15}
    s_and_b32 s{S_WV}, s{S_TYPE}, 3
    v_lshrrev_b32 v1, 3, v0
    v_and_b32 v2, 7, v0
    v_lshrrev_b32 v4, 4, v0
    s_cmp_ge_u32 s{S_TYPE}, 4
    s_cbranch_scc1 G2_START
    @save top""")

X = 128; ACC = [64, 96]; WF = 40; PK = 24; TMP = 12
S_XROW, S_XLDS, S_XCH, S_A2B, S_COL0, S_C1, S_C2, S_ST, S_XLD2 = 56, 57, 58, 59, 60, 64, 65, 66, 67
S_SIG = 68
S_FLA, S_KVF, S_KVW = 70, 72, 44

def g1_start(a):
    XV = 64; XA = 68; ST = 76
    a(f"""v_and_b32 v5, 15, v0
    v_xor_b32 v5, v5, v4
    v_lshlrev_b32 v5, 4, v5
    v_lshl_add_u32 v{XV}, v4, 10, v5
    v_xor_b32 v{XV+1}, 64, v{XV}
    v_xor_b32 v{XV+2}, 0x80, v{XV}
    v_xor_b32 v{XV+3}, 0xc0, v{XV}
    v_add_u32 v{XV+1}, 3072, v{XV+1}
    v_add_u32 v{XV+2}, 6144, v{XV+2}
    v_add_u32 v{XV+3}, 9216, v{XV+3}
    s_lshl2_add_u32 s{T0}, s{S_I}, s{S_WV}
    s_bfe_u32 s{S_SIG}, s{S_T}, 0x10002
    s_lshl1_add_u32 s{S_XROW}, s{T0}, s{S_SIG}
    s_lshl_b32 s{S_XROW}, s{S_XROW}, 14
    s_lshl_b32 s{S_XLDS}, s{S_WV}, 14
    s_add_u32 s{S_XCH}, s{S_ROT}, s{S_PERM}
    s_and_b32 s{S_XCH}, s{S_XCH}, 3
    s_lshl_b32 s{S_XCH}, s{S_XCH}, 8
    s_mov_b32 s{R_X+2}, {2048*1024}
    s_mov_b32 s{R_X+3}, 0x20000
    s_mov_b32 m0, s{S_XLDS}
    s_add_u32 s{T1}, s{S_XROW}, s{S_XCH}
    s_waitcnt lgkmcnt(0)
    s_mov_b64 s[{R_X}:{R_X+1}], s[{S_X}:{S_X+1}]""")
    def xdma(c):
        if c:
            if c == 4: a(f"s_xor_b32 s{S_XROW}, s{S_XROW}, 16384")
            a(chunk(S_XCH, c & 3) + f"""
            s_lshl_b32 s{S_XCH}, s{S_XCH}, 8
            s_add_u32 m0, s{S_XLDS if c < 4 else S_XLD2}, {(c&3)*4096}
            s_add_u32 s{T1}, s{S_XROW}, s{S_XCH}""")
        for q in range(4):
            a(f"buffer_load_dwordx4 v{XV+q}, s[{R_X}:{R_X+3}], s{T1} offen offset:{q*1024} lds ; @tag x{c}")
    xdma(0)
    stamp(a, 'g1_karg')
    decode(a)
    xdma(1)
    if P.prio_g1: a(f"s_setprio {P.prio_g1}")
    a(f"""s_add_u32 s44, s{S_WS}, {EPOCH}
    s_addc_u32 s45, s{S_WS+1}, 0
    s_or_b32 s46, s2, s{S_WV}
    s_cbranch_scc1 G1_NOEP
    s_load_dword s{S_NONCE}, s[44:45], 0 glc
    G1_NOEP:""")
    srd(a, R_WS, S_WS, WS_USED)
    a(f"""s_mov_b32 s{S_BUD}, {P.spin}
    s_add_u32 s{S_XLD2}, s{S_XLDS}, {RING+16384}
    s_mul_i32 s{S_A2B}, s{T0}, {TBS}
    s_lshr_b32 s{T1}, s{T0}, 1
    s_lshr_b32 s{T2}, s{S_IDX}, 1
    s_lshl2_add_u32 s{T1}, s{T1}, s{T2}
    s_lshl_b32 s{T1}, s{T1}, {P.fh}
    s_and_b32 s{T0}, s{T0}, 1
    s_and_b32 s{T2}, s{S_IDX}, 1
    s_lshl1_add_u32 s{T0}, s{T2}, s{T0}
    s_lshl2_add_u32 s{T0}, s{T0}, s{T1}
    s_add_u32 s{T0}, s{T0}, {FL_H}
    s_add_u32 s{S_FLA}, s{S_WS}, s{T0}
    s_addc_u32 s{S_FLA+1}, s{S_WS+1}, 0""")
    a(f"""v_and_b32 v6, 15, v0
    v_mov_b32 v7, v4
    v_xor_b32 v8, v6, v7
    v_lshlrev_b32 v8, 4, v8
    v_lshl_add_u32 v8, v6, 8, v8
    v_add_u32 v{XA}, s{S_XLDS}, v8""")
    for t in range(1, 4): a(f"v_xor_b32 v{XA+t}, {64*t}, v{XA}")
    for t in range(4): a(f"v_add_u32 v{XA+4+t}, {RING+16384}, v{XA+t}")
    a(f"""v_bfe_u32 v8, v0, 2, 2
    v_lshl_add_u32 v9, v7, 3, v8
    v_and_b32 v11, 3, v0
    v_bfe_u32 v10, v0, 3, 2
    v_lshlrev_b32 v10, 5, v10
    v_lshl_add_u32 v10, v11, 3, v10
    v_lshl_add_u32 v2, v9, 7, v10
    v_add_u32 v2, {RING}, v2
    v_xor_b32 v3, 32, v2
    v_xor_b32 v4, 64, v2
    v_xor_b32 v5, 0x60, v2
    v_lshlrev_b32 v1, 4, v0
    v_lshl_add_u32 v1, s{S_SIG}, 10, v1
    v_xor_b32 v6, 0x400, v1
    s_mov_b32 s{S_C1}, 0x3f803f80
    s_mov_b32 s{S_C2}, 0xffff0000""")
    DV = 80
    a(f"""s_cmp_eq_u32 s{S_TYPE}, 0
    s_movk_i32 s{T2}, 3072
    s_cselect_b32 s{S_STRIDE}, s{T2}, 3584
    s_cselect_b64 s[36:37], s[{S_WQKV}:{S_WQKV+1}], s[{S_W1}:{S_W1+1}]
    s_cselect_b32 s38, 10, 7
    s_cselect_b32 s39, 2, 3
    s_movk_i32 s{T2}, 128
    s_cselect_b32 s{T2}, s{T2}, 448
    s_mul_i32 s{T2}, s{T2}, s{S_IDX}
    s_lshr_b32 s{T0}, s{S_T}, 3
    s_lshl2_add_u32 s{T0}, s{T0}, s{S_I}
    s_lshl2_add_u32 s{T0}, s{T0}, s{S_WV}
    s_and_b32 s{T0}, s{T0}, 63
    s_lshl_b32 s{T0}, s{T0}, 3
    v_and_b32 v8, 7, v0
    v_add_u32 v8, s{T0}, v8
    v_mul_u32_u24 v8, s{S_STRIDE}, v8
    v_bfe_u32 v9, v0, 3, 2
    v_min_u32 v9, s39, v9
    v_lshlrev_b32 v9, s38, v9
    v_add3_u32 v8, v8, v9, s{T2}
    v_mov_b32 v{DV+1}, s37
    v_add_co_u32 v{DV}, vcc, s36, v8
    v_addc_co_u32 v{DV+1}, vcc, 0, v{DV+1}, vcc
    s_lshl2_add_u32 s{T0}, s2, s{S_WV}
    s_mul_i32 s{T1}, s{T0}, 14
    v_and_b32 v8, 15, v0
    v_min_u32 v8, 13, v8
    v_add_lshl_u32 v8, v8, s{T1}, 7
    v_mov_b32 v{DV+3}, s{S_W2+1}
    v_add_co_u32 v{DV+2}, vcc, s{S_W2}, v8
    v_addc_co_u32 v{DV+3}, vcc, 0, v{DV+3}, vcc
    v_cmp_gt_u32 vcc, 32, v0
    v_cndmask_b32 v{DV}, v{DV+2}, v{DV}, vcc
    v_cndmask_b32 v{DV+1}, v{DV+3}, v{DV+1}, vcc
    s_lshl_b32 s{T1}, s{T0}, 2
    v_add_lshl_u32 v8, v11, s{T1}, 7
    v_mov_b32 v{DV+3}, s{S_WO+1}
    v_add_co_u32 v{DV+2}, vcc, s{S_WO}, v8
    v_addc_co_u32 v{DV+3}, vcc, 0, v{DV+3}, vcc
    v_cmp_gt_u32 vcc, 48, v0
    v_cndmask_b32 v{DV}, v{DV+2}, v{DV}, vcc
    v_cndmask_b32 v{DV+1}, v{DV+3}, v{DV+1}, vcc""")
    for c in range(2, P.xla): xdma(c)
    a(f"""s_cmp_eq_u32 s{S_TYPE}, 0
    s_mov_b32 s{S_ST}, {hx(LOG2E)}
    s_cselect_b32 s{S_ST}, s{S_ST}, {hx(-LOG2E)}""")
    def stats(c):
        for d in range(16):
            r = X+16*c+d; z = c % 4 == 0 and d < 2
            a(f"v_dot2_f32_bf16 v{ST+(d&1)}, v{r}, s{S_C1}, {'0' if z else f'v{ST+(d&1)}'}")
            a(f"v_dot2_f32_bf16 v{ST+2+(d&1)}, v{r}, v{r}, {'0' if z else f'v{ST+2+(d&1)}'}")
    def fin():
        a(f"""v_add_f32 v10, v{ST}, v{ST+1}
        v_add_f32 v8, v{ST+2}, v{ST+3}
        v_permlane32_swap_b32 v10, v8
        v_add_f32 v10, v10, v8
        v_mov_b32 v8, v10
        v_permlane16_swap_b32 v10, v8
        v_add_f32 v10, v10, v8
        v_mul_f32 v10, {hx(1/512)}, v10
        v_mov_b32 v8, v10
        v_permlane32_swap_b32 v10, v8
        v_fma_f32 v8, -v10, v10, v8
        v_max_f32 v8, 0, v8
        v_add_f32 v8, {hx(1e-5)}, v8
        v_rsq_f32 v8, v8
        v_mul_f32 v8, s{S_ST}, v8
        v_mul_f32 v10, -v10, v8
        v_mov_b32 v9, v8
        v_mov_b32 v11, v10""")
    def norm(c):
        for ks in range(4*c, 4*c + 4):
            for d in range(4):
                r = X+4*ks+d; t = TMP + 2*d
                a(f"v_lshlrev_b32 v{t}, 16, v{r}")
                a(f"v_and_b32 v{t+1}, s{S_C2}, v{r}")
            for d in range(4):
                t = TMP + 2*d
                a(f"v_pk_fma_f32 {vr(t,2)}, {vr(t,2)}, v[8:9], v[10:11]")
            for d in range(4):
                t = TMP + 2*d
                a(f"v_cvt_pk_bf16_f32 v{X+4*ks+d}, v{t}, v{t+1}")
    nx = P.xla
    for op in P.xprog.split():
        k, c = op[0], int(op[1:] or 0)
        if k == 'r':
            a(f"@wait_vm x{c}")
            stamp(a, f'g1_x{c}')
            for t in range(4):
                a(f"ds_read_b128 {vr(X+16*c+4*t,4)}, v{XA+t+(4 if c >= 4 else 0)} offset:{(c&3)*4096}")
        elif k == 'x':
            if nx < 8: xdma(nx); nx += 1
        elif k == 's': stats(c)
        elif k == 'n': norm(c)
        elif k == 'f': fin()
        elif k == 'D': a(f"global_load_dword v23, {vr(DV,2)}, off")
        elif k == 'N': a(nonce_load())
        elif k == 'B':
            a("@wait_lgkm xr")
            a("s_barrier")
            stamp(a, 'g1_xdone')
        elif k == 'E':
            a(f"""s_cmp_lg_u32 s46, 0
            s_cbranch_scc1 G1_NONONCE
            @off
            s_mov_b32 s{S_NONCE+1}, 1
            s_waitcnt lgkmcnt(0)
            s_mul_i32 s{S_NONCE}, s{S_NONCE}, 1664525
            s_add_u32 s{S_NONCE}, s{S_NONCE}, 1013904223
            s_atomic_swap_x2 s[{S_NONCE}:{S_NONCE+1}], s[{S_DBG}:{S_DBG+1}], 0
            s_atomic_swap s{S_NONCE}, s[44:45], 0
            @on
            G1_NONONCE:""")
        else: raise ValueError(op)
    assert nx == 8
    a(nonce_check())
    stamp(a, 'g1_ln')
    a(f"""s_cmp_eq_u32 s{S_TYPE}, 0
    s_cbranch_scc1 G1_A
    @save g1""")

def g1_main(a, units, fill, lastbar):
    slots = []; tile0 = 0
    for (half, wa, buf) in units:
        for ks in range(16):
            for cb in range(2 if half else 4):
                if half: acc = [ACC[buf] + 8*g + 4*cb for g in range(2)]
                elif wa: acc = [ACC[buf] + 16*g + 4*cb for g in range(2)]
                else: acc = [ACC[buf] + 8*cb + 4*g for g in range(2)]
                if half: slots.append((tile0 + ks//8, (ks % 8)*2048, cb, True, acc, ks, wa))
                else: slots.append((tile0 + ks//4, (ks % 4)*4096, cb, False, acc, ks, wa))
        tile0 += 2 if half else 4
    def rd(n):
        tile, off, cb, half, acc, ks, wa = slots[n]
        sl = tile % NRING
        if n % 16 == 0 and tile <= lastbar:
            for it in fill.get(('bar', tile), []): a(it)
            stamp(a, f'g1_b{tile}')
            a("s_barrier")
        f = WF + 4*(n % P.NWF)
        if half: assert sl < 4
        o = (sl % 4)*16384 + off; o2 = o + (256 if half else 512)
        ad = (8 if half else 2) + cb
        a(f"ds_read_b64_tr_b16 {vr(f,2)}, v{ad} offset:{o}")
        a(f"ds_read_b64_tr_b16 {vr(f+2,2)}, v{ad} offset:{o2}")
    def rebase(n):
        tile, off, cb, half, acc, ks, wa = slots[n]
        if not half and n % 16 >= 12:
            if tile % NRING == 3: a(f"v_add_u32 v{2+cb}, 0x10000, v{2+cb}")
            if tile % NRING == 4: a(f"v_subrev_u32 v{2+cb}, 0x10000, v{2+cb}")
    for n in range(P.LA): rd(n)
    for n, (tile, off, cb, half, acc, ks, wa) in enumerate(slots):
        f = WF + 4*(n % P.NWF)
        if P.wait2 and n % P.wait2 == 0: a(f"@need {vr(WF + 4*((n + P.wait2 - 1) % P.NWF), 4)}")
        for k, g in enumerate((n & 1, 1 - (n & 1))):
            xr = X + 64*g + 4*ks
            A, B = (vr(f,4), vr(xr,4)) if wa else (vr(xr,4), vr(f,4))
            a(f"{M16} {vr(acc[g],4)}, {A}, {B}, {'0' if ks == 0 else vr(acc[g],4)}")
            if k == 0 and n + P.LA < len(slots): rd(n + P.LA)
        if n + P.LA < len(slots): rebase(n + P.LA)
        stamp(a, f'g1_m{n}')
        for it in fill.get(n, []): a(it)
        stamp(a, f'g1_n{n}')
        if n % 64 == 63 or n == len(slots) - 1: stamp(a, ['g1_u0','g1_u1','g1_u2','g1_7'][n//64])

def silu_ops(acc, nb, un, O=24):
    T = 12
    out = [f"s_add_u32 s{S_ST}, s{S_A2B}, s{S_COL0+un}"]
    pend = []; late = []
    for p in range(8*nb):
        r0, r1 = acc+2*p, acc+2*p+1
        t0, t1 = T + 2*(p & 1), T + 2*(p & 1) + 1
        out.append(f"v_exp_f32 v{t0}, v{r0}")
        out.extend(pend)
        out += [f"v_exp_f32 v{t1}, v{r1}", f"v_add_f32 v{t0}, 1.0, v{t0}", f"v_rcp_f32 v{t0}, v{t0}",
                f"v_add_f32 v{t1}, 1.0, v{t1}", f"v_rcp_f32 v{t1}, v{t1}", f"v_mul_f32 v{r0}, v{t0}, v{r0}"]
        fr = p//4; o = O + 4*fr
        pend = [f"v_mul_f32 v{r1}, v{t1}, v{r1}", f"v_cvt_pk_bf16_f32 v{o+(p&3)}, v{r0}, v{r1}"]
        if p % 4 == 3 and P.hstore is not None:
            (late if P.cluster else pend).append(
                f"buffer_store_dwordx4 {vr(o,4)}, v{(1, 6)[fr // nb]}, s[{R_WS}:{R_WS+3}], s{S_ST} offen offset:{(fr % nb)*2048} {P.hstore}")
    out.extend(pend)
    if late: out.append("\n".join(late))
    return out

def g1_f(a):
    fill = {}
    spread(fill, [f"s_mul_i32 s{T0}, s{S_IDX}, 14\ns_and_b32 s{T1}, s{S_IDX}, 1",
                  f"s_lshl1_add_u32 s{T2}, s{T1}, s{T0}\ns_lshl_b32 s{S_COL0}, s{T2}, 10",
                  f"s_add_u32 s{S_COL0+1}, s{S_COL0}, 4096\ns_add_u32 s{S_COL0+2}, s{S_COL0}, 8192",
                  f"s_cmp_eq_u32 s{T1}, 0\ns_cselect_b32 s{T1}, 12, 0",
                  f"s_add_u32 s{T0}, s{T0}, s{T1}\ns_lshl_b32 s{S_COL0+3}, s{T0}, 10",
                  "v_bfe_u32 v8, v0, 2, 2", "v_lshl_add_u32 v8, v7, 3, v8", "v_and_b32 v9, 1, v7", "v_lshlrev_b32 v9, 5, v9",
                  "v_lshl_add_u32 v8, v8, 6, v9", "v_and_b32 v9, 3, v0", "v_lshl_add_u32 v8, v9, 3, v8", f"v_add_u32 v8, {RING}, v8",
                  "v_xor_b32 v9, 32, v8"], 16, 44)
    spread(fill, silu_ops(ACC[0], 2, 0), 65, P.hi0)
    spread(fill, silu_ops(ACC[1], 2, 1), 129, P.hi1)
    ops2 = silu_ops(ACC[0], 2, 2)
    h = len(ops2)*P.e2frac//8
    spread(fill, ops2[:h], 193, 224)
    fill.setdefault(min(P.hi0 - 1 + P.pub_delay, 223), []).append("@wait_vm st0\n" + flag_set(S_FLA, 0))
    fill.setdefault(min(P.hi1 - 1 + P.pub_delay, 223), []).append("@wait_vm st1\n" + flag_set(S_FLA, 16))
    g1_main(a, [(False, True, 0), (False, True, 1), (False, True, 0), (True, True, 1)], fill, P.lastF)
    if P.prio_tail != P.prio_g1: a(f"s_setprio {P.prio_tail}")
    for op in ops2[h:]: a(op)
    for op in silu_ops(ACC[1], 1, 3, O=WF): a(op)
    stamp(a, 'g1_8')
    a("@wait_vm st2"); a(flag_set(S_FLA, 32))
    a("@wait_vm st3"); a(flag_set(S_FLA, 48))
    stamp(a, 'g1_9')
    stamp_out(a, 0)
    a("s_endpgm")

def phi_ops(acc, zacc):
    T = 12; S_C0, S_LN2 = S_COL0, S_COL0+1
    out = []; pend = []
    for p in range(16):
        r0, r1 = acc+2*p, acc+2*p+1
        t0, t1 = T + 2*(p & 1), T + 2*(p & 1) + 1
        out += [f"v_exp_f32 v{t0}, v{r0} clamp", f"v_max_f32 v{r0}, s{S_C0}, v{r0}"]
        out.extend(pend)
        out += [f"v_exp_f32 v{t1}, v{r1} clamp", f"v_max_f32 v{r1}, s{S_C0}, v{r1}",
                f"v_fmac_f32 v{t0}, s{S_LN2}, v{r0}", f"v_fmac_f32 v{t1}, s{S_LN2}, v{r1}"]
        pend = [f"v_cvt_pk_bf16_f32 v{PK+p}, v{t0}, v{t1}"]
        if zacc is not None and p >= 1:
            q = p - 1; z = zacc + q//4
            pend.append(f"v_dot2_f32_bf16 v{z}, v{PK+q}, s{S_C1}, {'0' if q % 4 == 0 else f'v{z}'}")
    out.extend(pend)
    if zacc is not None: out.append(f"v_dot2_f32_bf16 v{zacc+3}, v{PK+15}, s{S_C1}, v{zacc+3}")
    return out

def g1_a(a):
    S_C0, S_LN2, S_KVG, S_KVS = S_COL0, S_COL0+1, S_COL0+2, S_COL0+3
    a("G1_A:")
    a("@restore g1")
    fill = {}
    def put(g, ops): fill.setdefault(g, []).extend(ops)
    spread(fill, [f"s_mov_b32 s{S_C0}, {hx(1e-6*LOG2E)}\ns_mov_b32 s{S_LN2}, {hx(LN2)}",
           f"s_mul_i32 s{S_KVG}, s{S_IDX}, {16*KV_SLOT}\ns_add_u32 s{S_KVG}, s{S_KVG}, {KV_OFF}",
           f"s_lshl2_add_u32 s{T0}, s{S_IDX}, s{S_WV}\ns_lshl_b32 s{T0}, s{T0}, {P.fk}",
           f"s_add_u32 s{T0}, s{T0}, {FL_KV}\ns_lshl2_add_u32 s{T1}, s{S_I}, s{T0}",
           f"s_add_u32 s{S_KVF}, s{S_WS}, s{T0}\ns_addc_u32 s{S_KVF+1}, s{S_WS+1}, 0",
           f"s_add_u32 s{S_KVW}, s{S_WS}, s{T1}\ns_addc_u32 s{S_KVW+1}, s{S_WS+1}, 0",
           "v_lshlrev_b32 v20, 4, v0",
           f"s_lshl_b32 s{T0}, s{S_WV}, 12\ns_add_u32 s{T0}, s{T0}, {MISC}\nv_add_u32 v8, s{T0}, v20",
           "v_lshlrev_b32 v11, 2, v0", f"v_add_u32 v11, {MISC}, v11", f"s_lshl_b32 s{T0}, s{S_WV}, 8\nv_add_u32 v9, s{T0}, v11",
           f"s_lshl_b32 s{T0}, s{S_WV}, 10\ns_add_u32 s{T1}, s{T0}, {MISC}\nv_add_u32 v10, s{T1}, v20",
           f"s_mul_i32 s{T1}, s{S_I}, {KV_SLOT}\ns_add_u32 s{S_ST}, s{T1}, s{S_KVG}",
           f"s_add_u32 s{S_KVS}, s{T0}, s{S_ST}"], 14, 54)
    Z = 16
    ops = phi_ops(ACC[0], Z)
    ops += [f"v_permlane32_swap_b32 v{Z}, v{Z+2}", f"v_permlane32_swap_b32 v{Z+1}, v{Z+3}", f"v_add_f32 v{Z}, v{Z}, v{Z+2}",
            f"v_add_f32 v{Z+1}, v{Z+1}, v{Z+3}", f"v_permlane16_swap_b32 v{Z}, v{Z+1}", f"v_add_f32 v{Z}, v{Z}, v{Z+1}",
            f"ds_write_b32 v9, v{Z}"]
    g7 = 16*7 - P.LA
    spread(fill, ops, 65, g7)
    fill[('bar', 7)] = ["@wait_lgkm zw"]
    put(g7, [f"ds_read_b32 v{12+p}, v11 offset:{p*256}" for p in range(4)])
    spread(fill, ["v_add_f32 v12, v12, v13", "v_add_f32 v14, v14, v15", f"v_subrev_u32 v11, {MISC-4096}, v11", "v_add_f32 v22, v12, v14"], g7 + 4, g7 + 8)
    V = ACC[1]; D = ACC[1] + 16
    cv = [f"v_cvt_pk_bf16_f32 v{V+e}, v{V+2*e}, v{V+2*e+1}" for e in range(16)]
    g = 128; g9 = 16*9 - P.LA
    for k in range(4): put(g + k, cv[4*k:4*k+4])
    put(g+4, [f"{M16} {vr(D+4*h,4)}, {vr(PK+4*h,4)}, {vr(V+4*h,4)}, 0" for h in range(4)])
    for h in range(4): put(g + 6 + h//2, [f"ds_write_b128 v8, {vr(D+4*h,4)} offset:{h*1024}"])
    assert g + 7 < g9
    fill[('bar', 9)] = ["@wait_lgkm kvw"]
    g = g9
    put(g, [f"ds_read_b128 {vr(V+4*p,4)}, v10 offset:{p*4096}" for p in range(4)])
    ops = [f"v_add_f32 v{V+e}, v{V+e}, v{V+4+e}" for e in range(4)]
    ops += [f"v_add_f32 v{V+8+e}, v{V+8+e}, v{V+12+e}" for e in range(4)]
    ops += [f"v_add_f32 v{V+e}, v{V+e}, v{V+8+e}" for e in range(4)]
    ops += [f"buffer_store_dwordx4 {vr(V,4)}, v20, s[{R_WS}:{R_WS+3}], s{S_KVS} offen sc1",
            f"buffer_store_dword v22, v11, s[{R_WS}:{R_WS+3}], s{S_ST} offen sc1"]
    put(g+3, ops)
    put(g+5, [f"s_lshl2_add_u32 s{T0}, s{S_WV}, {AFL}\nv_mov_b32 v18, s{T0}", "v_mov_b32 v23, 0", "ds_write_b32 v18, v23"])
    put(g+6, ["v_and_b32 v19, 3, v0", "v_lshlrev_b32 v19, 2, v19", f"v_add_u32 v19, {AFL}, v19"])
    fill[('bar', 10)] = ["@wait_lgkm fz"]
    assert P.lastA >= 10
    spread(fill, ["v_and_b32 v11, 15, v0", f"v_mul_u32_u24 v11, {KV_SLOT}, v11", "v_lshl_add_u32 v11, v7, 4, v11",
           f"v_subrev_u32 v8, {MISC-AFR}, v10", f"v_add_u32 v10, {AFR}, v20", "v_mov_b32 v23, 1",
           f"s_lshl2_add_u32 s{T0}, s{S_IDX}, 112\ns_lshl_b32 s{T0}, s{T0}, 10\ns_add_u32 s{S_ST}, s{T0}, s{S_A2B}",
           f"s_lshl_b32 s{T0}, s{S_WV}, 6\ns_add_u32 s{T0}, s{T0}, s{S_KVG}\ns_add_u32 s{S_KVS}, s{T0}, 4096",
           f"s_lshl_b32 s{T0}, s{S_WV}, 10\ns_add_u32 s{S_KVG}, s{T0}, s{S_KVG}"], g + 7, g + 18)
    put(min(g + 4 + P.kv_delay, 191), ["@wait_vm kvs\n" + flag_set(S_KVW, 0)])
    if P.kvpoll[0] < 0: put(191 + P.kvpoll[0], [poll_load(4, 16, S_KVF, 0)])
    g1_main(a, [(False, False, 0), (False, False, 1), (False, True, 0)], fill, P.lastA)
    if P.prio_tail != P.prio_g1: a(f"s_setprio {P.prio_tail}")
    ph = phi_ops(ACC[0], None)
    n1 = len(ph)*max(P.kvpoll[0], 0)//8; n2 = len(ph)*P.kvpoll[1]//8
    for op in ph[:n1]: a(op)
    if P.kvpoll[0] >= 0: a(poll_load(4, 16, S_KVF, 0))
    for op in ph[n1:n2]: a(op)
    stamp(a, 'g1_7')
    a(poll_check(4, 16, S_KVF, 0))
    stamp(a, 'g1_8')
    ZR = X + 64
    a(f"buffer_load_dwordx4 {vr(ZR,4)}, v11, s[{R_WS}:{R_WS+3}], s{S_KVS} offen sc1")
    for m in range(16):
        a(f"buffer_load_dwordx4 {vr(X+4*m,4)}, v20, s[{R_WS}:{R_WS+3}], s{S_KVG} offen sc1")
        if m < 15: a(f"s_add_u32 s{S_KVG}, s{S_KVG}, {KV_SLOT}")
    for op in ph[n2:]: a(op)
    for sh in (1, 2, 4, 8):
        for e in range(4): a(f"v_add_f32 v{ZR+e}, v{ZR+e}, v{ZR+e} row_ror:{sh} row_mask:0xf bank_mask:0xf")
    a(f"v_cvt_pk_bf16_f32 v{ZR+3}, v{ZR+2}, v{ZR+3}")
    a(f"v_cvt_pk_bf16_f32 v{ZR+2}, v{ZR}, v{ZR+1}")
    for m in range(1, 16):
        for e in range(4): a(f"v_add_f32 v{X+e}, v{X+e}, v{X+4*m+e}")
    for e in range(2): a(f"v_cvt_pk_bf16_f32 v{ZR+e}, v{X+2*e}, v{X+2*e+1}")
    a(f"ds_write_b128 v8, {vr(ZR,4)}")
    a("ds_write_b32 v18, v23")
    stamp(a, 'g1_9')
    a(lds_wait(21, 19, 1))
    for hd in range(4): a(f"ds_read_b128 {vr(WF+4*hd,4)}, v10 offset:{hd*1024}")
    NUM = 64; DEN = 96
    order = [(g, hd) for hp in range(2) for g in range(2) for hd in (2*hp, 2*hp+1)]
    for g, hd in order:
        a(f"{M16K} {vr(DEN+16*g+4*hd,4)}, {vr(WF+4*hd+2,2)}, {vr(PK+8*g+2*hd,2)}, 0")
        a(f"{M16K} {vr(NUM+16*g+4*hd,4)}, {vr(WF+4*hd,2)}, {vr(PK+8*g+2*hd,2)}, 0")
    for k in range(0, 8, 2):
        g, hd = order[k]; d = NUM+16*g+4*hd; dn = DEN+16*g+4*hd
        a(f"""v_add_f32 v16, {hx(1e-6)}, v{dn}
        v_add_f32 v17, {hx(1e-6)}, v{dn+4}
        v_rcp_f32 v16, v16
        v_rcp_f32 v17, v17""")
        for e in range(8): a(f"v_mul_f32 v{d+e}, -v{d+e}, v{16+e//4}")
        for e in range(4): a(f"v_cvt_pk_bf16_f32 v{d+e}, v{d+2*e}, v{d+2*e+1}")
        a(f"buffer_store_dwordx4 {vr(d,4)}, v{(1, 6)[g]}, s[{R_WS}:{R_WS+3}], s{S_ST} offen offset:{(hd//2)*2048} sc1")
    stamp(a, 'g1_10')
    a("s_waitcnt vmcnt(0)")
    a(flag_set(S_FLA, 64))
    stamp(a, 'g1_11')
    stamp_out(a, 0)
    a("s_endpgm")

A2R = 8; B2R = 48; AC2 = 192
WV_F = AC2; WV_H = AC2 + 4; DUM = AC2 + 8
S_TH, S_THH, S_TO, S_TB, S_SO = 56, 60, 64, 68, 70
S_RB = 4; S_CB = 10; S_LW = 14; S_LX = 15; S_FH = 16
S_POLL = R_W

def g2_setup(a):
    a("G2_START:")
    a("@restore top")
    a("s_waitcnt lgkmcnt(0)")
    decode(a)
    a(f"""s_cmp_eq_u32 s{S_TYPE}, 0
    s_movk_i32 s{T0}, 3072
    s_cselect_b32 s{S_STRIDE}, s{T0}, 3584
    v_and_b32 v4, 1, v4
    v_lshlrev_b32 v5, 1, v4
    v_xor_b32 v5, v5, v2
    v_lshlrev_b32 v5, 4, v5
    v_mad_u32_u24 v{WV_F}, v1, s{S_STRIDE}, v5
    s_lshl_b32 s{T0}, s{S_STRIDE}, 3
    s_sub_u32 s{T0}, s{T0}, 1024
    v_xor_b32 v{WV_F+1}, 64, v{WV_F}
    v_add_u32 v{WV_F+1}, s{T0}, v{WV_F+1}
    s_lshl_b32 s{T0}, s{T0}, 1
    v_add_u32 v{WV_F+2}, s{T0}, v{WV_F}
    v_add_u32 v{WV_F+3}, s{T0}, v{WV_F+1}
    v_lshrrev_b32 v8, 2, v0
    v_and_b32 v9, 3, v0
    v_lshlrev_b32 v10, 4, v9
    v_and_b32 v11, 32, v0
    v_xor_b32 v10, v10, v11
    v_mad_u32_u24 v{WV_H}, v8, s{S_STRIDE}, v10
    s_lshl_b32 s{T0}, s{S_STRIDE}, 4
    s_sub_u32 s{T0}, s{T0}, 1024
    v_add_u32 v{WV_H+1}, s{T0}, v{WV_H}
    v_add_u32 v{WV_H+2}, s{T0}, v{WV_H+1}
    v_add_u32 v{WV_H+3}, s{T0}, v{WV_H+2}
    s_mov_b32 s{S_BUD}, {P.spin}""")
    if P.prio_g2: a(f"s_setprio {P.prio_g2}")
    a(f"""s_cmp_eq_u32 s{S_TYPE}, 0
    s_cselect_b64 s[{R_W}:{R_W+1}], s[{S_WQKV}:{S_WQKV+1}], s[{S_W1}:{S_W1+1}]
    s_lshl_b32 s{R_W+2}, s{S_STRIDE}, 9
    s_mov_b32 s{R_W+3}, 0x20000""")
    srd(a, R_X, S_X, 2048*1024)
    srd(a, R_WS, S_WS, WS_USED)
    srd(a, R_W2, S_W2, 1792*1024)
    srd(a, R_WO, S_WO, 512*1024)
    srd(a, R_OUT, S_OUT, 2048*1024)
    for tau in range(4):
        a(chunk(T0, tau))
        a(f"""s_lshl2_add_u32 s{T0}, s{T0}, s{S_WV}
        s_lshl_b32 s{T0}, s{T0}, 5
        s_mul_i32 s{S_RB+tau}, s{T0}, s{S_STRIDE}""")
    a(f"""s_lshr_b32 s{T2}, s{S_WV}, 1
    s_lshl_b32 s{T2}, s{T2}, 2
    s_and_b32 s{T1}, s{S_WV}, 1""")
    for tau in range(2):
        a(chunk(T0, ('s', T2)))
        a(f"""s_lshl1_add_u32 s{T0}, s{T0}, s{T1}
        s_lshl_b32 s{T0}, s{T0}, 6
        s_mul_i32 s{S_RB+4+tau}, s{T0}, s{S_STRIDE}
        s_add_u32 s{T2}, s{T2}, 8""")
    a(f"""s_lshl_b32 s58, s{S_IDX}, 7
    s_mul_i32 s59, s{S_IDX}, 448
    s_and_b32 s60, s{S_IDX}, 1
    s_lshl_b32 s{T0}, s60, 6
    s_add_u32 s61, s{T0}, s59
    s_add_u32 s62, s58, 1024
    s_add_u32 s{T0}, s58, 2048
    s_add_u32 s{T1}, s61, 128
    s_add_u32 s{T2}, s61, 256
    s_cmp_eq_u32 s{S_TYPE}, 0
    s_cselect_b32 s{S_CB}, s62, s61
    s_cselect_b32 s{S_CB+1}, s{T0}, s{T1}
    s_cselect_b32 s{S_CB+2}, s58, s{T2}
    s_cmp_eq_u32 s60, 0
    s_cselect_b32 s{T0}, 384, 0
    s_add_u32 s{S_CB+3}, s59, s{T0}
    s_lshl_b32 s{S_LW}, s{S_WV}, 12
    s_add_u32 s{S_LW}, s{S_LW}, {RING}
    s_lshl_b32 s{S_LX}, s{S_WV}, 14""")
    a(f"""s_lshr_b32 s{T0}, s{S_IDX}, 2
    s_lshl1_add_u32 s{T0}, s{S_I}, s{T0}
    s_lshr_b32 s{T2}, s{S_T}, 2
    s_xor_b32 s{T2}, s{T2}, {P.ntx}
    s_lshl_b32 s{T2}, s{T2}, 7
    v_lshrrev_b32 v4, 4, v0
    v_lshlrev_b32 v5, 1, v4
    v_xor_b32 v5, v5, v2
    v_lshlrev_b32 v5, 4, v5
    v_lshl_add_u32 v1, v1, 10, v5
    v_add_u32 v1, s{T2}, v1
    v_add_u32 v2, 7168, v1
    s_lshl2_add_u32 s{T1}, s{T0}, s{S_WV}
    s_lshl_b32 s{T1}, s{T1}, {P.fh}
    s_add_u32 s{T1}, s{T1}, {FL_H}
    s_add_u32 s{S_FH}, s{S_WS}, s{T1}
    s_addc_u32 s{S_FH+1}, s{S_WS+1}, 0
    s_lshl_b32 s{T1}, s{S_TYPE}, 1
    s_xor_b32 s{T1}, s{T1}, s{S_WV}
    s_lshl2_add_u32 s{T0}, s{T0}, s{T1}
    s_lshl_b32 s{S_STRIDE}, s{T0}, 14
    s_add_u32 s{S_STRIDE}, s{S_STRIDE}, s{T2}
    s_lshr_b32 s{T0}, s{T0}, 1
    s_mul_i32 s{S_TB}, s{T0}, {TBS}
    s_xor_b32 s{T0}, s{T0}, 1
    s_mul_i32 s{S_TB+1}, s{T0}, {TBS}
    s_and_b32 s{T1}, s{T1}, 1
    s_lshl_b32 s{T1}, s{T1}, 10
    v_lshl_add_u32 v5, v0, 4, s{T1}
    v_xor_b32 v6, 0x400, v5
    v_bfe_u32 v11, v0, 3, 2
    v_lshlrev_b32 v11, 5, v11
    v_lshl_add_u32 v11, v9, 3, v11
    v_lshl_add_u32 v11, v8, 7, v11
    v_add_u32 v0, s{S_LX}, v11
    v_xor_b32 v3, 32, v0
    v_xor_b32 v4, 64, v0
    v_xor_b32 v7, 0x60, v0""")
    if P.touch:
        a(f"""s_load_dword s{S_DUM}, s[{S_FH}:{S_FH+1}], 0 glc
        s_load_dword s{S_DUM}, s[{S_FH}:{S_FH+1}], 64 glc
        s_lshl2_add_u32 s{T0}, s{S_IDX}, s{S_WV}
        s_lshl_b32 s{T0}, s{T0}, {P.fk}
        s_add_u32 s{T0}, s{T0}, {FL_KV}
        s_load_dword s{S_DUM}, s[{S_WS}:{S_WS+1}], s{T0} glc""")
    g2_tables(a)
    stamp(a, 'g2_setup')

def g2_tables(a):
    a(f"""s_lshr_b32 s{T2}, s{S_T}, 2
    s_mul_i32 s{T2}, s{T2}, {P.brot[0]}
    s_mul_i32 s{T0}, s{S_T}, {P.brot[1]}
    s_add_u32 s{T2}, s{T2}, s{T0}
    s_mul_i32 s{S_I}, s{S_WV}, 28
    s_lshl_b32 s{S_IDX}, s{S_WV}, 3""")
    for j in range(4):
        a(f"""s_add_u32 s{T0}, s{T2}, {j}
        s_and_b32 s{T0}, s{T0}, 3
        s_lshl1_add_u32 s{T1}, s{T0}, s{S_IDX}
        s_lshl_b32 s{S_TO+j}, s{T1}, 10
        s_and_b32 s{T1}, s{T0}, 1
        s_lshl1_add_u32 s{T1}, s{T1}, s{S_I}""")
        if j < 2:
            a(f"""s_add_u32 s{S_THH+j}, s{T1}, 12
            s_lshl_b32 s{S_THH+j}, s{S_THH+j}, 10""")
        a(f"""s_lshr_b32 s{T0}, s{T0}, 1
        s_lshl4_add_u32 s{T1}, s{T0}, s{T1}
        s_lshl_b32 s{S_TH+j}, s{T1}, 10""")

def step_info(d):
    if d < 12: return (S_TH + d % 4, (d//4)*4096, (d//4)*65536, R_W2)
    if d < 14: return (S_THH + d - 12, 0, 0, R_W2)
    return (S_TO + d - 14, 112*1024, 0, R_WO)

def g2_body(a, typ):
    NT = 14 if typ == 'F' else 12
    last = P.lastF if typ == 'F' else P.lastA
    SRES = S_STRIDE
    regsteps = [0, 1] + list(range(6, 13))
    def breg(d): return B2R + 16*regsteps.index(d)
    order = P.border or (regsteps + [2, 3, 4, 5, 17])
    xo = [d for d in order if d < 17]
    assert sorted(xo[:9]) == regsteps and sorted(order) == list(range(13)) + [17]
    slot = {d: k % 4 for k, d in enumerate(xo)}
    for d in range(13, 17): slot[d] = slot[d - 11]
    slot[17] = 4
    TRX = [0, 3, 4, 7]; TRM = [B2R + 32 + k for k in range(4)]
    nbar = [0]; nvm = [0]; defer = []
    lastrd = {}; owner = {}
    def flush(pred):
        idx = [k for k, d in enumerate(defer) if pred(d)]
        if idx:
            for d in defer[:idx[-1]+1]: b2rd(d[1], breg(d[1]))
            del defer[:idx[-1]+1]
    def vm(text, thr=True):
        if thr:
            flush(lambda d: d[0] <= nvm[0])
            a(f"@throttle {P.maxout}")
        a(text); nvm[0] += 1
    def wtile(t):
        half = t >= 12
        un, tau = (3, t - 12) if half else (t//4, t % 4)
        assert t < NRING or nbar[0] > t - 3, (t, nbar)
        stamp(a, f'g2_w{t}')
        a(f"""s_add_u32 m0, s{S_LW}, {(t % NRING)*16384}
        s_add_u32 s{T1}, s{S_CB+un}, s{S_RB+(4 if half else 0)+tau}""")
        for q in range(4):
            vm(f"buffer_load_dwordx4 v{(WV_H if half else WV_F)+q}, s[{R_W}:{R_W+3}], s{T1} offen offset:{q*1024} lds ; @tag w{t}")
    def b2dma(d, hf, thr=True):
        sl = slot[d]
        if hf == 0:
            if sl in owner: flush(lambda x: x[1] == owner[sl])
            if sl in lastrd: a(f"@wait_lgkm {lastrd[sl]}")
            owner[sl] = d
        tb, _, c2, R = step_info(d)
        if sl == 4:
            assert typ == 'F' or nbar[0] > 10
            a(f"s_add_u32 m0, s{S_LW}, {MISC - RING + hf*2048}")
        else: a(f"s_add_u32 m0, s{S_LX}, {sl*4096 + hf*2048}")
        a(f"s_lshl4_add_u32 s{T1}, s{tb}, {c2 + hf*16384}")
        for q in range(2):
            if P.nob2 and thr: continue
            vm(f"buffer_load_dwordx4 v{1+q}, s[{R}:{R+3}], s{T1} offen offset:{q*1024} lds ; @tag b{d}", thr)
        if hf == 1 and d in regsteps: defer.append((nvm[0] + P.maxout, d))
    def b2rd(d, dst, rds=range(8)):
        sl = slot[d]; o = (sl % 4)*4096
        a(f"@wait_vm b{d}")
        for r in rds:
            ad = (TRX if sl < 4 else TRM)[r >> 1]
            a(f"ds_read_b64_tr_b16 {vr(dst+2*r,2)}, v{ad} offset:{o+2048*(r&1)} ; @tag r{d}")
        lastrd[sl] = f"r{d}"
    prog = (P.progF if typ == 'F' else P.progA).replace(' ', '')
    assert prog.count('W') == NT and prog.count('B') == 28 and prog.count('|') == 1 and prog.count('P') == 1 \
        and prog.count('.') == last + 1 and prog.index('P') > prog.rindex('W'), prog
    nw = nb = 0; bar = False
    for c in prog:
        if c == 'W':
            assert bar
            wtile(nw); nw += 1
        elif c == 'B':
            assert bar
            b2dma(order[nb//2], nb & 1); nb += 1
        elif c == '|':
            a("s_barrier"); bar = True
            a(nonce_load())
        elif c == '.':
            k = nbar[0]
            need = k if k < last else NT - 1
            assert nw > need
            a(f"@wait_vm w{need}")
            if k == 0: a(nonce_check())
            stamp(a, f'g2_e{k}')
            a("s_barrier")
            stamp(a, f'g2_t{k}')
            nbar[0] += 1
        elif c == 'P': a(poll_load(S_POLL, 4, S_FH, 0))
        else: raise ValueError(c)
    flush(lambda d: True)
    stamp(a, 'g2_p1end')
    if P.prio_g2b != P.prio_g2: a(f"s_setprio {P.prio_g2b}")
    minis = [(d, g) for d in range(14) for g in range(4)] + [(d, g) for g in (3, 2, 1, 0) for d in range(14, 18)]
    NM = len(minis); NB = 2*P.RD
    bbuf = {d: breg(d) for d in regsteps}
    for d in (2, 3, 4, 5): bbuf[d] = B2R + 16*(d & 1)
    bbuf.update({13: B2R, 14: B2R + 16, 15: breg(8), 16: breg(9), 17: breg(10)})
    stage = {0: 0, 16: 1, 32: 2, 48: 3, 56: 4}
    iss = {}; lo = -1
    for m in range(NM):
        lo = max(lo, P.hold.get(m, -1)); iss[m] = max(m - NB, lo, -1)
    pollat = {}
    for (m, k), prev in zip(list(stage.items())[1:], stage): pollat[max(iss[m] - 2*P.pa, iss[prev])] = k
    cur = {}
    def a2pre(m):
        d, g = minis[m]
        if m in stage:
            stamp(a, f'g2_pre{m//2}')
            a(poll_check(S_POLL, 4, S_FH, 16*stage[m]))
            stamp(a, f'g2_c{m//2}')
            adj = {0: 0, 16: 4096, 32: 4096, 48: -8192, 56: 112*1024}[m]
            for k in range(2):
                if adj: a(f"s_add_i32 s{S_TB+k}, s{S_TB+k}, {adj}")
        if cur.get('k') != (d, g >> 1):
            a(f"s_add_u32 s{S_SO}, s{step_info(d)[0]}, s{S_TB+(g>>1)}"); cur['k'] = (d, g >> 1)
    def a2ld(m):
        a(f"buffer_load_dwordx4 {vr(A2R+4*(m%NB),4)}, v{5+(minis[m][1]&1)}, s[{R_WS}:{R_WS+3}], s{S_SO} offen sc1")
    def after(t, part):
        ms = [m for m in range(NM) if iss[m] == t]
        if part == 0:
            if ms: a2pre(ms[0])
        else:
            for n, m in enumerate(ms):
                if n: a2pre(m)
                a2ld(m)
            if t in pollat: a(poll_load(S_POLL, 4, S_FH, 16*pollat[t]))
    after(-1, 0); after(-1, 1)
    XA = B2R + 36; XR = B2R + 40; UU = B2R + 48; RA = breg(11)
    extra = {}
    def put(m, k, txt): extra.setdefault((m, k), []).append(txt)
    gaps = [(m, k) for m in range(NM) for k in (1, 2, 3)]
    for d in (2, 3, 4, 5):
        for r in range(8): put(*gaps[12*(d-1) + r], ('rd', d, (r,)))
    for n, d in enumerate((13, 14, 15, 16, 17)):
        for r in range(8): put(24 + 6*n + (0, 0, 1, 2, 3, 3, 4, 5)[r], (1, 2, 1, 1, 1, 2, 1, 1)[r], ('rd', d, (r,)))
    for d in range(2, 6):
        for h in range(2): put(4*d + 2 + h, 3, ('dma', d + 11, h))
    put(28, 2, f"""v_mbcnt_lo_u32_b32 v{XA+1}, -1, 0
        v_mbcnt_hi_u32_b32 v{XA+1}, -1, v{XA+1}""")
    put(29, 2, f"""v_and_b32 v{XA}, 15, v{XA+1}
        v_lshlrev_b32 v{XA}, 10, v{XA}""")
    put(31, 2, f"""v_bfe_u32 v{XA+2}, v{XA+1}, 4, 1
        v_lshl_add_u32 v{XA}, v{XA+2}, 5, v{XA}""")
    put(32, 2, f"""v_lshrrev_b32 v{XA+2}, 5, v{XA+1}
        v_lshl_add_u32 v{XA}, v{XA+2}, 4, v{XA}""")
    put(34, 2, f"""v_lshlrev_b32 v{XA+1}, 4, v{XA+1}
        v_add_u32 v{XA+2}, s{S_LX}, v{XA+1}""")
    put(35, 2, f"""s_sub_u32 s{T0}, s{S_LW}, s{S_LX}
        s_add_u32 s{T0}, s{T0}, {MISC-RING}""")
    for k in range(4): put(37 + k//2, 2, f"v_add_u32 v{TRM[k]}, s{T0}, v{TRX[k]}")
    put(P.resat, 3, f"""buffer_load_dwordx4 {vr(XR,4)}, v{XA}, s[{R_X}:{R_X+3}], s{SRES} offen
        buffer_load_dwordx4 {vr(XR+4,4)}, v{XA}, s[{R_X}:{R_X+3}], s{SRES} offen offset:64""")
    put(56, 2, f"""s_mov_b32 s{T0}, {hx(-LN2)}
        s_mov_b32 s{T1}, 0xffff0000""")
    for g in range(1, 4):
        put(56 + g, 2, f"""s_xor_b32 s{T2}, s{S_WV}, {g}
        s_lshl_b32 s{T2}, s{T2}, 14
        v_add_u32 v{RA+g}, s{T2}, v{XA+1}""")
    for g in (3, 2, 1):
        m0 = 56 + 4*(4 - g)
        for cb in range(4):
            put(m0 + (cb >> 1), 2 + (cb & 1), f"ds_write_b128 v{XA+2}, {vr(AC2+16*g+4*(3-cb),4)} offset:{(g-1)*4096+(3-cb)*1024}")
    sw = [f"v_permlane16_swap_b32 v{XR+4*p+k}, v{XR+4*p+2+k}" for p in range(2) for k in range(2)]
    un = [f"v_lshlrev_b32 v{UU+2*k}, 16, v{XR+k}\nv_and_b32 v{UU+2*k+1}, s{T1}, v{XR+k}" for k in range(8)]
    put(62, 1, "\n".join(sw[:2])); put(62, 3, "\n".join(sw[2:]))
    for k in range(8): put((63, 66, 67)[k//3], 1 + k % 3, un[k])
    PR = [None, A2R, A2R + 16, B2R + 16]
    bar_at = P.barat
    for m, (d, g) in enumerate(minis):
        if m % 2 == 0: stamp(a, f'g2_s{m//2}')
        if m == bar_at:
            stamp(a, 'g2_tb')
            a("s_waitcnt lgkmcnt(0)\ns_barrier")
            stamp(a, 'g2_ta')
            for cb in range(4):
                for gg in (1, 2, 3): a(f"ds_read_b128 {vr(AC2+16*gg+4*cb,4)}, v{RA+gg} offset:{(gg-1)*4096+cb*1024}")
        for k in range(4):
            cb = k if m % 2 == 0 else 3 - k
            acc = AC2 + 16*g + 4*cb
            a(f"{M16} {vr(acc,4)}, {vr(bbuf[d]+4*cb,4)}, {vr(A2R+4*(m%NB),4)}, {'0' if d == 0 else vr(acc,4)}")
            for it in extra.get((m, k), []):
                if isinstance(it, str): a(it)
                elif it[0] == 'rd': b2rd(it[1], bbuf[it[1]], it[2])
                else: b2dma(it[1], it[2], thr=False)
            if P.split:
                if k == 3: after(m, 0)
                if k == P.split - 1 and m: after(m - 1, 1)
        if not P.split: after(m, 0); after(m, 1)
    stamp(a, 'g2_mend')
    if bar_at >= NM:
        a("s_waitcnt lgkmcnt(0)\ns_barrier")
        for cb in range(4):
            for gg in (1, 2, 3): a(f"ds_read_b128 {vr(AC2+16*gg+4*cb,4)}, v{RA+gg} offset:{(gg-1)*4096+cb*1024}")
    for p in range(2):
        for cb in (2*p, 2*p+1):
            for gg in (1, 2, 3, 0):
                for e in range(4): a(f"v_fmac_f32 v{UU+4*cb+e}, s{T0}, v{AC2+16*gg+4*cb+e}")
        for k in range(4): a(f"v_cvt_pk_bf16_f32 v{XR+4*p+k}, v{UU+8*p+2*k}, v{UU+8*p+2*k+1}")
        a(sw[2*p]); a(sw[2*p+1])
        a(f"buffer_store_dwordx4 {vr(XR+4*p,4)}, v{XA}, s[{R_OUT}:{R_OUT+3}], s{SRES} offen offset:{64*p} {P.oflag}")
    stamp(a, 'g2_end')
    stamp_out(a, 1)
    a("s_endpgm")

def kernel():
    U.n = 0
    a = Asm()
    prologue(a)
    g1_start(a)
    g1_f(a)
    g1_a(a)
    g2_setup(a)
    a(f"""s_cmp_eq_u32 s{S_TYPE}, 0
    s_cbranch_scc1 G2_A
    @save g2""")
    g2_body(a, 'F')
    a("G2_A:")
    a("@restore g2")
    g2_body(a, 'A')
    a("K_END:")
    a("s_endpgm")
    return a.finish(P.align)

def build():
    kn = NAME + "_kernel"
    s = HEADER
    s += "; @launch grid=(256,1,1) block=(512,1,1) lds=163840\n"
    s += '.amdgcn_target "amdgcn-amd-amdhsa--gfx950"\n.text\n'
    if P.pad is not None: s += f".p2align 10\n.fill {P.pad//4}, 4, 0xbf800000\n"
    s += entry(kn) + kernel()
    s += f"K_LAST:\n.set CODE_BYTES, K_LAST-{kn}\n"
    s += '.section .rodata,"a"\n.p2align 6\n' + kd(kn)
    return s
if __name__ == "__main__":
    for kv in sys.argv[2:]:
        k, v = kv.split("=", 1)
        assert hasattr(P, k), k
        setattr(P, k, eval(v))
    txt = build()
    open(sys.argv[1], "w").write(txt)
```
